```python
import torch

def _softmax(x, axis=-1):
    return torch.softmax(x, dim=axis)

def _gelu(x):
    return torch.nn.functional.gelu(x, approximate='tanh')

def _silu(x):
    return torch.nn.functional.silu(x)

def _sigmoid(x):
    return torch.sigmoid(x)

def _layernorm(x, axis=-1, eps=1e-05):
    m = x.mean(dim=axis, keepdim=True)
    v = x.var(dim=axis, keepdim=True, unbiased=False)
    return (x - m) / torch.sqrt(v + eps)

def _scatter_add(tgt, idx, src, axis=0):
    return tgt.clone().index_add_(axis, idx, src)

def _segment_sum(src, seg, n):
    out = torch.zeros((n,) + src.shape[1:], dtype=src.dtype)
    return out.index_add_(0, seg, src)

def _pad(x, pw):
    flat = tuple((v for pair in reversed(pw) for v in pair))
    return torch.nn.functional.pad(x, flat)
kernel_name = 'adaLN_cond__gqa_block_cached__swiglu_ffn__decode'

def setup_inputs():

    _w = lambda a: (lambda t: t.to(torch.bfloat16) if t.is_floating_point() else t)(torch.as_tensor(a))

    def _A_setup():
        B, Sq, D = (2, 1, 576)
        Hq, Hkv, Sk, Dh = (32, 16, 16384, 128)
        assert Hq % Hkv == 0, (Hq, Hkv)
        return {'x': _w((lambda *s: torch.randn(*s, dtype=torch.bfloat16) * 0.1)(B, Sq, D)), 'k_cache': _w((lambda *s: torch.randn(*s, dtype=torch.bfloat16) * 0.8)(B, Hkv, Sk, Dh)), 'v_cache': _w((lambda *s: torch.randn(*s, dtype=torch.bfloat16) * 0.8)(B, Hkv, Sk, Dh)), 'wq': _w((lambda *s: torch.randn(*s, dtype=torch.bfloat16) * 0.8)(D, Hq * Dh) * D ** (-0.5)), 'wo': _w((lambda *s: torch.randn(*s, dtype=torch.bfloat16) * 0.8)(Hq * Dh, D) * (Hq * Dh) ** (-0.5))}
    _A_in = _A_setup()

    def _B_setup():
        B, S, D, F = (2, 1, 576, 4608)
        return {'x': _w((lambda *s: torch.randn(*s, dtype=torch.bfloat16) * 0.1)(B, S, D)), 'w_gate': _w((lambda *s: torch.randn(*s, dtype=torch.bfloat16) * 0.1)(D, F)), 'w_up': _w((lambda *s: torch.randn(*s, dtype=torch.bfloat16) * 0.1)(D, F)), 'w_down': _w((lambda *s: torch.randn(*s, dtype=torch.bfloat16) * 0.1)(F, D))}
    _B_in = _B_setup()
    return {'A_x': _A_in['x'], 'A_k_cache': _A_in['k_cache'], 'A_v_cache': _A_in['v_cache'], 'A_wq': _A_in['wq'], 'A_wo': _A_in['wo'], 'B_x': _B_in['x'], 'B_w_gate': _B_in['w_gate'], 'B_w_up': _B_in['w_up'], 'B_w_down': _B_in['w_down'], 'c': _w((lambda *s: torch.randn(*s, dtype=torch.bfloat16) * 0.4)(2, 576) * 8.0), 'w_mod': _w((lambda *s: torch.randn(*s, dtype=torch.bfloat16) * 0.4)(576, 6 * 576) * 576 ** (-0.5) * 8.0)}

def reference(A_x, A_k_cache, A_v_cache, A_wq, A_wo, B_x, B_w_gate, B_w_up, B_w_down, c, w_mod):

    def _A_ref(x, k_cache, v_cache, wq, wo):
        B, Sq, D = x.shape
        Hq, Dh = (32, 128)
        Hkv = k_cache.shape[1]
        rep = Hq // Hkv
        q = (lambda x, *d: x.permute(*d))((x @ wq).reshape(B, Sq, Hq, Dh), 0, 2, 1, 3)
        k = (lambda x, n, axis: torch.repeat_interleave(x, n, dim=axis))(k_cache, rep, axis=1)
        v = (lambda x, n, axis: torch.repeat_interleave(x, n, dim=axis))(v_cache, rep, axis=1)
        scores = torch.einsum('bhqd,bhkd->bhqk', q, k) * Dh ** (-0.5)
        p = _softmax(scores, axis=-1)
        o = torch.einsum('bhqk,bhkd->bhqd', p, v)
        return (lambda x, *d: x.permute(*d))(o, 0, 2, 1, 3).reshape(B, Sq, Hq * Dh) @ wo

    def _B_ref(x, w_gate, w_up, w_down):
        g = _silu(x @ w_gate)
        u = x @ w_up
        return g * u @ w_down
    x = A_x
    mod = (_silu(c) @ w_mod).reshape(c.shape[0], 6, 1, -1)
    sa, ca, ga, sb, cb, gb = (mod[:, 0].clone(), mod[:, 1].clone(), mod[:, 2].clone(), mod[:, 3].clone(), mod[:, 4].clone(), mod[:, 5].clone())
    h = _layernorm(x, axis=-1) * (1 + ca) + sa
    x = x + ga * _A_ref(h, A_k_cache, A_v_cache, A_wq, A_wo)
    h = _layernorm(x, axis=-1) * (1 + cb) + sb
    x = x + gb * _B_ref(h, B_w_gate, B_w_up, B_w_down)
    return x
```

```python
import re
KNAME = "adaLN_cond__gqa_block_cached__swiglu_ffn__decode_kernel"
HEADER = """; Kernarg layout (112 bytes): A_x 0, K 8, V 16, wq 24, wo 32, B_x 40, w_gate 48, w_up 56, w_down 64, c 72, w_mod 80, out 88, debug 96, ws 104
"""
class Asm:
    def __init__(self):
        self.lines = []
        self.uid = 0
    def __call__(self, s=""):
        for l in s.split("\n"):
            l = l.strip()
            if l: self.lines.append(l)
    def label(self, base="L"):
        self.uid += 1
        return f"{base}_{self.uid}"
    def text(self):
        return "\n".join(self.lines) + "\n"

def kernel_prologue(name):
    return f""".globl {name}
.p2align 8
.type {name},@function
{name}:
"""
def kernel_desc(name, vgpr, sgpr=102, accum=None):
    if accum is None: accum = (vgpr + 3) // 4 * 4
    return f""".section .rodata,"a"
.p2align 6
.amdhsa_kernel {name}
  .amdhsa_next_free_vgpr {vgpr}
  .amdhsa_next_free_sgpr {sgpr}
  .amdhsa_accum_offset {accum}
  .amdhsa_group_segment_fixed_size 0
  .amdhsa_kernarg_size 112
  .amdhsa_user_sgpr_count 2
  .amdhsa_user_sgpr_kernarg_segment_ptr 1
  .amdhsa_system_sgpr_workgroup_id_x 1
.end_amdhsa_kernel
.text
"""

TRANS = ("v_exp_f32", "v_log_f32", "v_rcp_f32", "v_rsq_f32", "v_sqrt_f32", "v_sin_f32", "v_cos_f32", "v_rcp_iflag_f32")
def regs_of(tok):
    tok = tok.strip()
    neg = tok.lstrip("-")
    m = re.fullmatch(r"abs\((.*)\)", neg) or re.fullmatch(r"\|(.*)\|", neg)
    if m: neg = m.group(1)
    m = re.fullmatch(r"([vsa])\[(\d+):(\d+)\]", neg)
    if m: return {(m.group(1), k) for k in range(int(m.group(2)), int(m.group(3)) + 1)}
    m = re.fullmatch(r"([vsa])(\d+)", neg)
    if m: return {(m.group(1), int(m.group(2)))}
    if neg in ("vcc", "vcc_lo", "vcc_hi"): return {("s", "vcc")}
    if neg in ("exec", "exec_lo", "exec_hi"): return {("s", "exec")}
    if neg == "m0": return {("s", "m0")}
    return set()

class I:
    def __init__(self, text):
        self.text = text
        t = text.split(";")[0].strip()
        self.is_label = t.endswith(":")
        self.is_dir = t.startswith(".")
        self.mn = ""; self.ops = []; self.mods = ""
        self.dst = set(); self.src = set()
        if self.is_label or self.is_dir or not t: return
        p = t.split(None, 1)
        self.mn = p[0]
        rest = p[1] if len(p) > 1 else ""
        parts = []; depth = 0; cur = ""
        for ch in rest:
            if ch in "[(": depth += 1
            if ch in "])": depth -= 1
            if ch == "," and depth == 0: parts.append(cur); cur = ""
            else: cur += ch
        if cur.strip(): parts.append(cur)
        ops = []; mods = []
        for q in parts:
            w = q.strip().split()
            if not w: continue
            ops.append(w[0]); mods += w[1:]
        self.ops = ops; self.mods = " ".join(mods)
        mn = self.mn
        self.valu = mn.startswith("v_")
        self.mfma = mn.startswith("v_mfma")
        self.salu = mn.startswith("s_")
        self.ds = mn.startswith("ds_")
        self.vmem = mn.startswith(("global_", "buffer_", "flat_"))
        self.trans = mn.replace("_e32", "").replace("_e64", "") in TRANS
        self.dpp = "_dpp" in mn or any(k in self.mods for k in ("quad_perm", "row_", "wave_"))
        self.perml = mn.startswith("v_permlane")
        self.rdlane = mn.startswith(("v_readlane", "v_readfirstlane"))
        R = [regs_of(o) for o in ops]
        allr = set().union(*R) if R else set()
        nodst = (mn.startswith(("s_cmp", "s_waitcnt", "s_barrier", "s_branch", "s_cbranch", "s_nop", "s_sleep", "s_endpgm",
                                "s_setprio", "s_bitcmp", "global_store", "buffer_store", "ds_write")) or
                 (mn.startswith("ds_") and not mn.startswith(("ds_read", "ds_bperm", "ds_perm", "ds_swiz")) and "rtn" not in mn) or
                 (mn.startswith("buffer_load") and " lds" in " " + self.mods) or
                 (mn.startswith(("global_atomic", "buffer_atomic")) and "sc0" not in self.mods))
        if nodst:
            self.src = allr
        elif self.perml:
            self.dst = allr; self.src = allr
        elif mn.startswith(("v_add_co", "v_sub_co", "v_addc_co", "v_subb_co", "v_subrev_co")):
            self.dst = R[0] | R[1]; self.src = set().union(*R[2:])
        elif mn.startswith("v_mad_u64"):
            self.dst = R[0] | R[1]; self.src = set().union(*R[2:])
        else:
            self.dst = R[0] if R else set()
            self.src = set().union(*R[1:]) if len(R) > 1 else set()
            if mn.startswith(("v_fmac", "v_pk_fmac", "v_dot2c", "s_addk", "s_mulk")) or self.dpp or mn.startswith("v_writelane"):
                self.src |= self.dst
        if mn.startswith(("s_and_saveexec", "s_or_saveexec", "s_andn2_saveexec")):
            self.dst = self.dst | {("s", "exec")}; self.src = self.src | {("s", "exec")}
        if self.mfma:
            self.A, self.B, self.C = R[1], R[2], R[3]
            self.D = R[0]
            self.passes = 8 if "32x32" in mn else 4
        self.wide_store = self.vmem and ("store" in mn) and ("x3" in mn or "x4" in mn)
        if self.wide_store:
            self.sdata = R[1] if mn.startswith("global") else R[0]
        self.ldsdma = mn.startswith(("buffer_load", "global_load")) and (" lds" in " " + self.mods or "_lds_" in mn)
    def states(self):
        if self.is_label or self.is_dir or not self.mn: return 0
        if self.mn == "s_nop": return int(self.ops[0], 0) + 1
        return 1

def need(p, c):
    if not p.mn or not c.mn: return 0
    n = 0
    pv = {r for r in p.dst if r[0] in "va"}; ps = {r for r in p.dst if r[0] == "s"}
    cvs = {r for r in c.src if r[0] in "va"}; css = {r for r in c.src if r[0] == "s"}
    cvd = {r for r in c.dst if r[0] in "va"}
    if p.valu and not p.mfma:
        if c.rdlane and pv & cvs: n = max(n, 1)
        if c.valu and ps & css:
            n = max(n, 4 if c.rdlane or c.mn.startswith("v_writelane") else 2)
        if c.vmem and ps & css: n = max(n, 5)
        if c.dpp and pv & regs_of(c.ops[1]): n = max(n, 2)
        if c.perml and pv & cvs: n = max(n, 2)
        if p.trans and c.valu and pv & cvs: n = max(n, 1)
        if c.mfma and pv & cvs: n = max(n, 2)
    if p.mfma:
        four = p.passes == 4
        if c.mfma:
            if p.D & c.C and not (p.D == c.C and p.passes == c.passes): n = max(n, 6 if four else 10)
            if p.D & (c.A | c.B): n = max(n, 8 if four else 12)
            if p.D & c.D and not (p.D == c.C): n = max(n, 8 if four else 12)
        elif (c.valu and p.D & (cvs | cvd)) or ((c.vmem or c.ds) and p.D & (cvs | cvd)):
            n = max(n, 8 if four else 12)
        if c.valu and not c.mfma and p.C & cvd: n = max(n, 3 if four else 7)
    if p.wide_store and c.valu and p.sdata & cvd: n = max(n, 2)
    if p.wide_store and (c.vmem or c.ds) and p.sdata & cvd: n = max(n, 1)
    if p.salu and ("s", "m0") in p.dst and c.ldsdma: n = max(n, 1)
    return n

LOOK = 24
def fix_hazards(lines, verbose=False):
    ins = [I(l) for l in lines]
    out = []
    added = 0
    for c in ins:
        if c.mn:
            dist = 0; want = 0
            for p in reversed(out):
                if dist >= LOOK: break
                if p.mn:
                    k = need(p, c)
                    if k > dist: want = max(want, k - dist)
                dist += p.states()
            while want > 0:
                k = min(want, 16)
                out.append(I(f"s_nop {k-1}")); want -= k; added += k
        out.append(c)
    labels = {p.text.split(";")[0].strip()[:-1]: j for j, p in enumerate(out) if p.is_label}
    problems = []
    for j, p in enumerate(out):
        if p.mn.startswith(("s_branch", "s_cbranch")):
            tgt = labels.get(p.ops[0])
            if tgt is None: continue
            pre = []; k = j; d = 0
            while k >= 0 and d < LOOK:
                pre.append(out[k]); d += out[k].states(); k -= 1
            post_d = 0; k = tgt
            while k < len(out) and post_d < LOOK:
                c = out[k]
                if c.mn:
                    dist = post_d
                    for q in pre:
                        if q.mn:
                            w = need(q, c)
                            if w > dist: problems.append((q.text, p.text, c.text, w, dist))
                        dist += q.states()
                    post_d += c.states()
                    if c.mn in ("s_branch", "s_endpgm"): break
                k += 1
    for pr in problems: print("EDGE HAZARD:", pr)
    if verbose: print("nops added:", added)
    return [p.text for p in out], problems
```

```python
import sys
from asmlib import *

NWG = 256
D_RING = 4
RINGW = D_RING * 8192
NITEM_W = 32
L_RING = 0
L_STG = 4 * RINGW
STGW = 5120
L_XV0 = L_STG + 4 * STGW
L_XV1 = L_XV0 + 2304
L_QB = L_XV1 + 2304
L_MRG = L_QB + 512
MRGW = 1056
L_RED = L_MRG + 4 * MRGW
L_REDB = L_RED + 512
L_FLAG = L_REDB + 512
L_OB = L_FLAG + 64
L_GU = L_OB + 256
L_END = L_GU + 512
L_RED2 = L_XV1
LDS_BYTES = 163840
assert L_END <= LDS_BYTES
F_HS = L_FLAG
F_Q = L_FLAG + 4
W_EPOCH = 0
W_MOD = 0x1000
W_Q = 0x8000
W_PART = 0x20000
PARTW = 1152
W_Y = 0x70000
W_X1 = 0xC0000
W_Z = 0xD0000
W_STAMP = 0x200000
SPIN_LIMIT = 400000
LOG2E = 0x3fb8aa3b
NLOG2E = 0xbfb8aa3b
SCALE = 0x3db504f3
EPS = 0x3727c5ac
INV576 = 0x3ae38e39

S_X, S_K, S_V, S_WQ, S_WO = "s[4:5]", (6, 7), (8, 9), (10, 11), (12, 13)
S_WS = "s[30:31]"; S_DBG = "s[28:29]"; S_OUT = "s[26:27]"; S_C = "s[22:23]"


class Gen:
    def __init__(self, stamps=False, opts=None):
        self.a = Asm()
        self.stamps = stamps
        self.o = opts or {}
        self.nst = 0

    def stamp(self, k):
        if self.stamps:
            self.a(f"s_memrealtime s[{80+2*k}:{81+2*k}]")

    def stamp_flush(self):
        if not self.stamps: return
        a = self.a
        a("s_waitcnt vmcnt(0) lgkmcnt(0)")
        a("s_mov_b64 exec, 1")
        a(f"s_lshl_b32 s44, s2, 3\ns_add_u32 s44, s44, s3\ns_lshl_b32 s44, s44, 7\ns_add_u32 s44, s44, {W_STAMP}")
        a("v_mov_b32 v2, s44")
        for k in range(10):
            a(f"v_mov_b32 v4, s{80+2*k}\nv_mov_b32 v5, s{81+2*k}\nglobal_store_dwordx2 v2, v[4:5], {S_WS} offset:{8*k}\ns_nop 1")
        a("s_waitcnt vmcnt(0)")

    def srd(self, r, base, nrec):
        self.a(f"s_mov_b32 s{r}, s{base[0]}\ns_and_b32 s{r+1}, s{base[1]}, 0xffff\ns_mov_b32 s{r+2}, {nrec}\ns_mov_b32 s{r+3}, 0x20000")

    def red16_32(self, v, t, op):
        self.a(f"v_mov_b32 {t}, {v}\nv_permlane16_swap_b32 {t}, {v}\n{op} {v}, {v}, {t}")
        self.a(f"v_mov_b32 {t}, {v}\nv_permlane32_swap_b32 {t}, {v}\n{op} {v}, {v}, {t}")

    def red32(self, v, t, op):
        self.a(f"v_mov_b32 {t}, {v}\nv_permlane32_swap_b32 {t}, {v}\n{op} {v}, {v}, {t}")

    def dppop(self, op, v, ctrl):
        self.a(f"{op}_dpp {v}, {v}, {v} {ctrl} row_mask:0xf bank_mask:0xf")

    def rbf(self, v, t):
        self.a(f"v_cvt_pk_bf16_f32 {t}, {v}, {v}\nv_lshlrev_b32 {v}, 16, {t}")

    def rbf2(self, x, y, t):
        self.a(f"v_cvt_pk_bf16_f32 {t}, {x}, {y}\nv_lshlrev_b32 {x}, 16, {t}\nv_and_b32 {y}, 0xffff0000, {t}")

    def unpk(self, lo, hi, src):
        self.a(f"v_lshlrev_b32 {lo}, 16, {src}\nv_and_b32 {hi}, 0xffff0000, {src}")

    def guard(self, code):
        self.a(f"s_add_u32 s73, s73, 1\ns_cmp_gt_u32 s73, {SPIN_LIMIT}\ns_movk_i32 s74, {code}\ns_cbranch_scc1 L_fail")

    def hsync(self):
        a = self.a
        L = a.label("L_hs")
        a("s_waitcnt lgkmcnt(0)")
        a("s_mov_b64 exec, 1")
        a("ds_add_u32 v60, v61")
        a("s_mov_b64 exec, -1")
        a("s_add_u32 s70, s70, 4")
        a(f"{L}:")
        self.guard(1)
        a("ds_read_b32 v62, v60")
        a("s_waitcnt lgkmcnt(0)")
        a("v_readfirstlane_b32 s71, v62")
        a("s_cmp_ge_u32 s71, s70")
        a(f"s_cbranch_scc0 {L}")

    def build(self):
        a = self.a
        a(HEADER)
        a(f"; @launch grid=({NWG},1,1) block=(512,1,1) lds={LDS_BYTES}")
        a('.amdgcn_target "amdgcn-amd-amdhsa--gfx950"\n.text')
        a(kernel_prologue(KNAME))
        a(f"""
        s_cmp_ge_u32 s2, {NWG}
        s_cbranch_scc1 L_exit
        s_load_dwordx16 s[4:19], s[0:1], 0
        s_load_dwordx8 s[20:27], s[0:1], 64
        s_load_dwordx4 s[28:31], s[0:1], 96
        """)
        self.stamp(0)
        a("""
        v_lshrrev_b32 v1, 6, v0
        v_readfirstlane_b32 s3, v1
        v_and_b32 v1, 63, v0
        s_mov_b32 s73, 0
        s_cmp_ge_u32 s3, 4
        s_cbranch_scc1 L_helper
        """)
        self.streamer()
        a("L_helper:")
        self.helper()
        a(f"""
        L_fail:
        s_waitcnt vmcnt(0) lgkmcnt(0)
        s_mov_b64 exec, 1
        s_lshl_b32 s75, s2, 8
        s_or_b32 s74, s74, s75
        s_lshl_b32 s75, s3, 4
        s_or_b32 s74, s74, s75
        v_mov_b32 v2, 32
        v_mov_b32 v3, s74
        global_store_dword v2, v3, {S_DBG} sc0 sc1
        s_waitcnt vmcnt(0)
        L_exit:
        s_endpgm""")
        lines, probs = fix_hazards(a.lines, True)
        a.lines = lines
        a(kernel_desc(KNAME, 256))
        return a.text()

    def streamer(self):
        a = self.a
        a("""
        v_lshrrev_b32 v20, 4, v1            ; gq / G
        v_and_b32 v21, 15, v1               ; p / r / i
        v_xor_b32 v22, v21, v20
        v_lshlrev_b32 v22, 4, v22           ; (p^g)*16
        v_lshlrev_b32 v23, 8, v20           ; g*256
        """)
        for j in range(4):
            a(f"v_xor_b32 v24, {64*j}, v22\nv_add_u32 v{2+j}, v23, v24")
        for j in range(2):
            a(f"v_or_b32 v24, {4*j}, v20\nv_lshlrev_b32 v24, 1, v24\nv_xor_b32 v24, v21, v24\nv_lshlrev_b32 v24, 4, v24\nv_add_u32 v{6+j}, v23, v24")
        a(f"s_mul_i32 s45, s3, {RINGW}")
        a("v_lshlrev_b32 v25, 8, v21\nv_add_u32 v25, s45, v25     ; ring + r*256")
        for j in range(4):
            a(f"v_xor_b32 v24, {64*j}, v22\nv_add_u32 v{8+j}, v25, v24")
        a("""
        v_lshrrev_b32 v26, 2, v21
        v_lshl_add_u32 v26, v20, 2, v26     ; key
        v_and_b32 v27, 7, v26               ; kappa
        v_lshlrev_b32 v27, 5, v27           ; kappa*32
        v_lshlrev_b32 v26, 8, v26           ; key*256
        v_and_b32 v28, 3, v21
        v_lshl_add_u32 v26, v28, 3, v26
        v_add_u32 v26, s45, v26
        v_add_u32 v26, 4096, v26
        """)
        for u in range(8):
            a(f"v_xor_b32 v24, {32*u}, v27\nv_add_u32 v{12+u}, v26, v24")
        a("""
        s_lshr_b32 s46, s2, 3               ; group
        s_and_b32 s47, s2, 7                ; member
        s_lshl_b32 s47, s47, 2
        s_add_u32 s44, s47, s3              ; worker 0..31
        s_waitcnt lgkmcnt(0)
        s_lshl_b32 s48, s46, 22
        s_add_u32 s32, s6, s48
        s_addc_u32 s33, s7, 0
        s_and_b32 s33, s33, 0xffff
        s_mov_b32 s34, 0x400000
        s_mov_b32 s35, 0x20000
        s_add_u32 s36, s8, s48
        s_addc_u32 s37, s9, 0
        s_and_b32 s37, s37, 0xffff
        s_mov_b32 s38, 0x400000
        s_mov_b32 s39, 0x20000
        s_lshl_b32 s49, s44, 12
        s_barrier
        """)
        self.stamp(1)

        def issue(slot):
            a(f"s_add_u32 m0, s45, {slot*8192}")
            for j in range(4):
                a(f"buffer_load_dwordx4 v{2+j}, s[32:35], s49 offen offset:{j*1024} nt lds")
            a(f"s_add_u32 m0, s45, {slot*8192+4096}")
            for j in range(4):
                a(f"buffer_load_dwordx4 v{6+(j&1)}, s[36:39], s49 offen offset:{j*1024} nt lds")
            a(f"s_add_u32 s49, s49, {32*4096}")
        for sl in range(D_RING):
            issue(sl)
        a(f"""
        s_mov_b32 s50, {SCALE:#x}
        s_mov_b32 s51, {LOG2E:#x}
        s_mov_b32 s52, {NLOG2E:#x}
        v_mov_b32 v112, 0xff800000
        v_mov_b32 v113, 0
        """)
        for r in range(80, 112): a(f"v_mov_b32 v{r}, 0")
        Lq = a.label("L_wq")
        a(f"""
        v_mov_b32 v115, {F_Q}
        {Lq}:
        """)
        self.guard(4)
        a(f"""
        s_sleep 1
        ds_read_b32 v114, v115
        s_waitcnt lgkmcnt(0)
        v_readfirstlane_b32 s53, v114
        s_cmp_eq_u32 s53, 1
        s_cbranch_scc0 {Lq}
        """)
        self.stamp(2)
        a(f"""
        v_and_b32 v114, 1, v1
        v_lshlrev_b32 v114, 8, v114
        v_lshrrev_b32 v115, 4, v1
        v_lshl_add_u32 v114, v115, 4, v114
        v_add_u32 v114, {L_QB}, v114
        """)
        for j in range(4):
            a(f"ds_read_b128 v[{20+4*j}:{23+4*j}], v114 offset:{64*j}")
        a("s_waitcnt lgkmcnt(0)")
        a(f"s_mov_b32 s54, 0          ; round")
        nround = NITEM_W // D_RING
        a("L_sloop:")
        for sl in range(D_RING):
            steady = (D_RING - 1) * 8
            if sl == 0:
                a(f"s_waitcnt vmcnt({steady})")
            else:
                La = a.label("L_wa"); Lb = a.label("L_wb")
                a(f"s_cmp_eq_u32 s54, {nround-1}\ns_cbranch_scc1 {La}\ns_waitcnt vmcnt({steady})\ns_branch {Lb}\n{La}:\ns_waitcnt vmcnt({(D_RING-1-sl)*8})\n{Lb}:")
            off = sl * 8192
            for j in range(4):
                a(f"ds_read_b128 v[{36+4*j}:{39+4*j}], v{8+j} offset:{off}")
            for u in range(8):
                a(f"ds_read_b64_tr_b16 v[{52+2*u}:{53+2*u}], v{12+u} offset:{off}")
            a("s_waitcnt lgkmcnt(8)")
            for j in range(4):
                c = "0" if j == 0 else "v[68:71]"
                a(f"v_mfma_f32_16x16x32_bf16 v[68:71], v[{36+4*j}:{39+4*j}], v[{20+4*j}:{23+4*j}], {c}")
            a("s_waitcnt lgkmcnt(0)")
            Ln = a.label("L_ni")
            a(f"s_cmp_eq_u32 s54, {nround-1}\ns_cbranch_scc1 {Ln}")
            issue(sl)
            a(f"{Ln}:")
            a("s_nop 5")
            a("""
            v_cvt_pk_bf16_f32 v76, v68, v69
            v_cvt_pk_bf16_f32 v77, v70, v71
            v_lshlrev_b32 v72, 16, v76
            v_and_b32 v73, 0xffff0000, v76
            v_lshlrev_b32 v74, 16, v77
            v_and_b32 v75, 0xffff0000, v77
            v_mul_f32 v72, s50, v72
            v_mul_f32 v73, s50, v73
            v_mul_f32 v74, s50, v74
            v_mul_f32 v75, s50, v75
            v_cvt_pk_bf16_f32 v76, v72, v73
            v_cvt_pk_bf16_f32 v77, v74, v75
            v_lshlrev_b32 v72, 16, v76
            v_and_b32 v73, 0xffff0000, v76
            v_lshlrev_b32 v74, 16, v77
            v_and_b32 v75, 0xffff0000, v77
            v_max3_f32 v114, v72, v73, v74
            v_max_f32 v114, v114, v75
            """)
            self.red16_32("v114", "v115", "v_max_f32")
            Ls = a.label("L_nr")
            a(f"""
            v_max_f32 v114, v114, v112
            v_cmp_gt_f32 vcc, v114, v112
            s_cbranch_vccz {Ls}
            v_sub_f32 v116, v112, v114
            v_mul_f32 v116, s51, v116
            v_exp_f32 v116, v116
            v_mov_b32 v112, v114
            v_mul_f32 v113, v113, v116
            """)
            for r in range(80, 112, 2):
                a(f"v_pk_mul_f32 v[{r}:{r+1}], v[{r}:{r+1}], v[116:117] op_sel_hi:[1,0]")
            a(f"{Ls}:")
            a("""
            v_mul_f32 v118, s52, v112
            v_fma_f32 v72, v72, s51, v118
            v_fma_f32 v73, v73, s51, v118
            v_fma_f32 v74, v74, s51, v118
            v_fma_f32 v75, v75, s51, v118
            v_exp_f32 v72, v72
            v_exp_f32 v73, v73
            v_exp_f32 v74, v74
            v_exp_f32 v75, v75
            v_cvt_pk_bf16_f32 v78, v72, v73
            v_cvt_pk_bf16_f32 v79, v74, v75
            v_add_f32 v72, v72, v73
            v_add_f32 v74, v74, v75
            v_add_f32 v72, v72, v74
            v_add_f32 v113, v113, v72
            """)
            for u in range(8):
                a(f"v_mfma_f32_16x16x16_bf16 v[{80+4*u}:{83+4*u}], v[{52+2*u}:{53+2*u}], v[78:79], v[{80+4*u}:{83+4*u}]")
        a(f"s_add_u32 s54, s54, 1\ns_cmp_lt_u32 s54, {nround}\ns_cbranch_scc1 L_sloop")
        self.stamp(3)
        self.red16_32("v113", "v115", "v_add_f32")
        a(f"""
        s_mul_i32 s53, s3, {MRGW}
        s_add_u32 s53, s53, {L_MRG}
        v_and_b32 v114, 1, v1
        v_lshlrev_b32 v115, 9, v114          ; head*512
        v_lshrrev_b32 v116, 4, v1
        v_lshl_add_u32 v115, v116, 4, v115   ; + G*16
        v_add_u32 v115, s53, v115
        v_lshlrev_b32 v114, 3, v114
        v_add_u32 v114, s53, v114            ; head*8
        v_mov_b32 v116, v112
        v_mov_b32 v117, v113
        s_mov_b32 s56, 0x00030003
        s_mov_b32 s57, 0x00030003
        s_mov_b64 exec, s[56:57]
        """)
        for u in range(8):
            a(f"ds_write_b128 v115, v[{80+4*u}:{83+4*u}] offset:{64*u}")
        a(f"""
        s_mov_b64 exec, 3
        ds_write_b64 v114, v[116:117] offset:1024
        s_mov_b64 exec, -1
        s_waitcnt lgkmcnt(0)
        s_barrier
        s_cmp_lg_u32 s3, 0
        s_cbranch_scc1 L_sdone
        """)
        a(f"""
        v_lshrrev_b32 v2, 5, v1              ; head
        v_and_b32 v3, 31, v1                 ; dq
        v_lshlrev_b32 v4, 9, v2
        v_lshl_add_u32 v4, v3, 4, v4
        v_add_u32 v4, {L_MRG}, v4
        v_lshlrev_b32 v5, 3, v2
        v_add_u32 v5, {L_MRG+1024}, v5
        """)
        for w in range(4):
            a(f"ds_read_b64 v[{8+2*w}:{9+2*w}], v5 offset:{w*MRGW}")
        for w in range(4):
            a(f"ds_read_b128 v[{16+4*w}:{19+4*w}], v4 offset:{w*MRGW}")
        a("""
        s_waitcnt lgkmcnt(4)
        v_max3_f32 v6, v8, v10, v12
        v_max_f32 v6, v6, v14               ; M
        """)
        for w in range(4):
            a(f"v_sub_f32 v{8+2*w}, v{8+2*w}, v6\nv_mul_f32 v{8+2*w}, s51, v{8+2*w}")
        for w in range(4):
            a(f"v_exp_f32 v{8+2*w}, v{8+2*w}")
        a("""
        v_mul_f32 v7, v8, v9
        v_fmac_f32 v7, v10, v11
        v_fmac_f32 v7, v12, v13
        v_fmac_f32 v7, v14, v15             ; L
        s_waitcnt lgkmcnt(0)
        """)
        for i in range(4):
            a(f"v_mul_f32 v{32+i}, v8, v{16+i}")
            for w in range(1, 4):
                a(f"v_fmac_f32 v{32+i}, v{8+2*w}, v{16+4*w+i}")
        for i in range(4):
            a(f"v_min_u32 v{32+i}, -2, v{32+i}")
        a(f"""
        v_min_u32 v6, -2, v6
        v_min_u32 v7, -2, v7
        s_mul_i32 s53, s2, {PARTW}
        s_add_u32 s53, s53, {W_PART}
        v_lshlrev_b32 v2, 4, v1
        v_add_u32 v2, s53, v2
        global_store_dwordx4 v2, v[32:35], {S_WS} sc0 sc1
        v_lshrrev_b32 v3, 5, v1
        v_lshlrev_b32 v3, 3, v3
        v_add_u32 v3, s53, v3
        s_mov_b32 s56, 1
        s_mov_b32 s57, 1
        s_mov_b64 exec, s[56:57]
        global_store_dwordx2 v3, v[6:7], {S_WS} offset:1024 sc0 sc1
        s_mov_b64 exec, -1
        """)
        self.stamp(4)
        a("L_sdone:")
        self.stamp_flush()
        a("s_endpgm")

    def t16_issue(self, which):
        a = self.a
        stride = 8192 if which == "q" else 6912
        base = (10, 11) if which == "q" else (24, 25)
        self.srd(32, base, 576 * stride)
        vo = "v2" if which == "q" else "v3"
        a(f"s_mul_i32 s50, s47, {32*stride}\ns_lshl_b32 s51, s46, 5\ns_add_u32 s50, s50, s51")
        a(f"s_mul_i32 s52, s47, {STGW}\ns_add_u32 s52, s52, {L_STG}")
        L = a.label("L_t16i")
        for j in range(5):
            if j == 4: a(f"s_cmp_ge_u32 s47, 2\ns_cbranch_scc1 {L}")
            a(f"s_add_u32 m0, s52, {j*1024}")
            a(f"buffer_load_dwordx4 {vo}, s[32:35], s50 offen nt lds")
            if j < 4: a(f"s_add_u32 s50, s50, {4*32*stride}")
        a(f"{L}:")

    def t16_frags(self):
        a = self.a
        for j in range(5):
            a(f"ds_read_b64_tr_b16 v[{32+4*j}:{33+4*j}], v4 offset:{j*1024}")
            a(f"ds_read_b64_tr_b16 v[{34+4*j}:{35+4*j}], v4 offset:{j*1024+128}")
        a("s_waitcnt lgkmcnt(0)")

    def t16_mma(self, xv, red):
        a = self.a
        a(f"v_add_u32 v6, {xv}, v5")
        for j in range(5):
            a(f"ds_read_b128 v[{64+4*j}:{67+4*j}], v6 offset:{j*256}")
        a("s_waitcnt lgkmcnt(0)")
        L = a.label("L_t16m")
        for j in range(5):
            if j == 4: a(f"s_cmp_ge_u32 s47, 2\ns_cbranch_scc1 {L}")
            c = "0" if j == 0 else "v[84:87]"
            a(f"v_mfma_f32_16x16x32_bf16 v[84:87], v[{64+4*j}:{67+4*j}], v[{32+4*j}:{35+4*j}], {c}")
        a(f"{L}:")
        a("s_nop 7")
        a(f"""
        v_and_b32 v6, 31, v1
        v_lshlrev_b32 v6, 2, v6
        s_lshl_b32 s50, s47, 7
        s_add_u32 s50, s50, {red}
        v_add_u32 v6, s50, v6
        ds_write_b32 v6, v84
        """)

    def t16_publish(self, red, wbase):
        a = self.a
        a(f"""
        v_and_b32 v6, 31, v1
        v_lshlrev_b32 v6, 2, v6
        v_add_u32 v6, {red}, v6
        ds_read_b32 v8, v6
        ds_read_b32 v9, v6 offset:128
        ds_read_b32 v10, v6 offset:256
        ds_read_b32 v11, v6 offset:384
        s_waitcnt lgkmcnt(0)
        v_add_f32 v8, v8, v9
        v_add_f32 v10, v10, v11
        v_add_f32 v8, v8, v10
        v_mov_b32_dpp v9, v8 quad_perm:[1,0,3,2] row_mask:0xf bank_mask:0xf
        v_cvt_pk_bf16_f32 v10, v8, v9
        v_mov_b32 v11, v58
        s_lshl_b32 s50, s46, 7
        s_add_u32 s50, s50, {wbase}
        v_lshrrev_b32 v6, 1, v1
        v_lshlrev_b32 v6, 3, v6
        v_add_u32 v6, s50, v6
        s_mov_b32 s50, 0x55555555
        s_mov_b32 s51, 0
        s_mov_b64 exec, s[50:51]
        global_store_dwordx2 v6, v[10:11], {S_WS} sc0 sc1
        s_mov_b64 exec, -1
        """)

    def poll_guard(self, L, code=2):
        self.guard(code)
        self.a(f"s_cmp_lg_u64 s[52:53], 0\ns_cbranch_scc1 {L}")

    def helper(self):
        a = self.a
        a(f"""
        s_sub_u32 s47, s3, 4
        s_and_b32 s50, s2, 7                 ; x
        s_lshr_b32 s51, s2, 5                ; a
        s_lshl_b32 s51, s51, 3
        s_add_u32 s51, s51, s50              ; 8a+x
        s_lshl_b32 s51, s51, 2
        s_bfe_u32 s52, s2, 0x20003           ; beta = (i>>3)&3
        s_add_u32 s46, s51, s52              ; tq
        v_lshrrev_b32 v6, 1, v1
        v_and_b32 v7, 1, v1
        v_lshlrev_b32 v7, 4, v7
        v_lshlrev_b32 v2, 13, v6
        v_add_u32 v2, v2, v7
        v_mul_u32_u24 v3, 6912, v6
        v_add_u32 v3, v3, v7
        v_lshrrev_b32 v8, 4, v1              ; G
        v_and_b32 v9, 15, v1                 ; i
        v_lshrrev_b32 v10, 2, v9
        v_lshl_add_u32 v10, v8, 3, v10       ; 8G + (i>>2)
        v_and_b32 v11, 3, v9
        v_lshlrev_b32 v11, 3, v11            ; (i&3)*8
        v_lshl_add_u32 v4, v10, 5, v11
        s_mul_i32 s50, s47, {STGW}
        s_add_u32 s72, s50, {L_STG}
        v_add_u32 v4, s72, v4
        v_bfe_u32 v12, v1, 2, 1
        v_mul_u32_u24 v5, 1152, v12
        v_lshl_add_u32 v5, v8, 4, v5
        s_lshl_b32 s50, s47, 6
        v_add_u32 v5, s50, v5                ; A pattern
        v_mov_b32 v60, {F_HS}
        v_mov_b32 v61, 1
        s_mov_b32 s70, 0
        s_waitcnt lgkmcnt(0)
        s_cmp_lt_u32 s46, 72
        s_cbranch_scc1 L_h_t1m
        """)
        self.t16_issue("q")
        a("s_branch L_h_t1d\nL_h_t1m:")
        self.t16_issue("m")
        a("L_h_t1d:")
        a(f"""
        v_mov_b32 v14, 0
        global_load_dword v58, v14, {S_WS} sc1
        v_bfe_u32 v14, v1, 3, 1
        v_mul_u32_u24 v13, 1152, v14
        v_lshrrev_b32 v14, 4, v1
        v_lshl_add_u32 v13, v14, 5, v13
        v_and_b32 v14, 7, v1
        v_lshl_add_u32 v13, v14, 2, v13
        s_lshl_b32 s50, s47, 7
        v_add_u32 v15, s50, v13
        """)
        a(f"""
        global_load_dword v16, v15, {S_C}
        global_load_dword v17, v15, {S_C} offset:512
        global_load_dword v18, v13, {S_C} offset:1024
        global_load_dword v19, v15, {S_X}
        global_load_dword v20, v15, {S_X} offset:512
        global_load_dword v21, v13, {S_X} offset:1024
        """)
        for bb in range(9):
            a(f"global_load_dword v{22+bb}, v13, {S_X} offset:{128*bb}")
        a(f"""
        s_mov_b32 s49, 1
        s_mov_b32 s48, 0
        s_cmp_lt_u32 s2, 144
        s_cbranch_scc0 L_h_r2
        s_lshr_b32 s50, s2, 4                ; a'
        s_lshl_b32 s50, s50, 3
        s_and_b32 s51, s2, 7
        s_add_u32 s50, s50, s51
        s_lshl_b32 s50, s50, 1
        s_bfe_u32 s51, s2, 0x10003
        s_add_u32 s48, s50, s51              ; f tile
        s_branch L_h_rd
        L_h_r2:
        s_mov_b32 s49, 2
        s_sub_u32 s48, s2, 144
        s_cmp_lt_u32 s2, 208
        s_cbranch_scc1 L_h_rd
        s_mov_b32 s49, 3
        s_sub_u32 s48, s2, 208
        s_cmp_lt_u32 s2, 244
        s_cbranch_scc1 L_h_rd
        s_mov_b32 s49, 0
        L_h_rd:
        """)
        a(f"""
        v_mov_b32 v40, -1
        v_mov_b32 v41, -1
        v_mov_b32 v42, -1
        v_mov_b32 v43, -1
        v_lshlrev_b32 v44, 4, v1
        s_mul_i32 s50, s2, {PARTW}
        s_add_u32 s50, s50, {W_PART}
        v_add_u32 v45, s50, v44
        s_cmp_eq_u32 s47, 0
        s_cbranch_scc0 L_h_s1
        global_store_dwordx4 v45, v[40:43], {S_WS} sc0 sc1
        s_mov_b64 exec, 0xff
        global_store_dwordx4 v45, v[40:43], {S_WS} offset:1024 sc0 sc1
        s_mov_b64 exec, -1
        L_h_s1:
        s_cmp_eq_u32 s49, 3
        s_cbranch_scc0 L_h_s2
        s_cmp_eq_u32 s47, 1
        s_cbranch_scc0 L_h_s3
        s_lshl_b32 s50, s48, 7
        s_add_u32 s50, s50, {W_X1}
        v_add_u32 v45, s50, v44
        s_mov_b64 exec, 0xff
        global_store_dwordx4 v45, v[40:43], {S_WS} sc0 sc1
        s_mov_b64 exec, -1
        s_branch L_h_s3
        L_h_s2:
        s_cmp_eq_u32 s49, 0
        s_cbranch_scc1 L_h_s3
        s_mov_b32 s51, {W_Z}
        s_cmp_eq_u32 s49, 2
        s_cselect_b32 s51, {W_Y}, s51
        s_mul_i32 s50, s48, 4608
        s_add_u32 s50, s50, s51
        s_mul_i32 s51, s47, 1152
        s_add_u32 s50, s50, s51
        v_add_u32 v45, s50, v44
        global_store_dwordx4 v45, v[40:43], {S_WS} sc0 sc1
        s_mov_b64 exec, 0xff
        global_store_dwordx4 v45, v[40:43], {S_WS} offset:1024 sc0 sc1
        s_mov_b64 exec, -1
        L_h_s3:
        """)
        a(f"""
        s_cmp_eq_u32 s47, 0
        s_cbranch_scc0 L_h_nb
        v_mov_b32 v46, 0
        v_mov_b32 v47, 0
        s_mov_b64 exec, 1
        ds_write_b64 v60, v[46:47]
        s_mov_b64 exec, -1
        s_waitcnt lgkmcnt(0)
        L_h_nb:
        s_barrier
        """)
        self.stamp(1)
        a("s_waitcnt vmcnt(0)")
        self.stamp(2)
        a("v_add_u32 v58, 1, v58            ; tag")
        a(f"s_mov_b32 s54, {NLOG2E:#x}")
        for k in range(3):
            src = f"v{16+k}"
            self.unpk("v8", "v9", src)
            a("""
            v_mul_f32 v10, s54, v8
            v_mul_f32 v11, s54, v9
            v_exp_f32 v10, v10
            v_exp_f32 v11, v11
            v_add_f32 v10, 1.0, v10
            v_add_f32 v11, 1.0, v11
            v_rcp_f32 v10, v10
            v_rcp_f32 v11, v11
            v_mul_f32 v8, v8, v10
            v_mul_f32 v9, v9, v11
            """)
            a(f"v_cvt_pk_bf16_f32 {src}, v8, v9")
        a(f"""
        v_add_u32 v14, {L_XV0}, v15
        v_add_u32 v12, {L_XV0}, v13
        ds_write_b32 v14, v16
        ds_write_b32 v14, v17 offset:512
        ds_write_b32 v12, v18 offset:1024
        """)
        for bb in range(9):
            self.unpk(f"v{64+2*bb}", f"v{65+2*bb}", f"v{22+bb}")
        a("v_add_f32 v8, v64, v65")
        for r in range(66, 82): a(f"v_add_f32 v8, v8, v{r}")
        self.red_b3("v8", "v9", "v_add_f32")
        a(f"v_mul_f32 v8, {INV576:#x}, v8")
        a("v_sub_f32 v10, v64, v8\nv_mul_f32 v11, v10, v10")
        for r in range(65, 82): a(f"v_sub_f32 v10, v{r}, v8\nv_fmac_f32 v11, v10, v10")
        self.red_b3("v11", "v9", "v_add_f32")
        a(f"v_mul_f32 v11, {INV576:#x}, v11    ; var")
        self.ln_denom("v8", "v11", "v9")
        for k in range(3):
            self.unpk(f"v{70+2*k}", f"v{71+2*k}", f"v{19+k}")
            self.ln_norm(f"v{70+2*k}", f"v{71+2*k}", "v8", "v11", "v9")
        self.t16_frags()
        self.hsync()
        a(f"""
        s_cmp_eq_u32 s47, 0
        s_cbranch_scc0 L_h_nat
        s_mov_b64 exec, 1
        v_mov_b32 v14, 0
        global_atomic_add v14, v61, {S_DBG} sc1
        s_mov_b64 exec, -1
        L_h_nat:
        s_cmp_lt_u32 s46, 72
        s_cbranch_scc0 L_h_hop1
        """)
        for k in range(6): a(f"v_mov_b32 v{88+k}, v{70+k}")
        self.t16_mma(L_XV0, L_RED)
        self.t16_issue("q")
        self.hsync()
        a("s_cmp_eq_u32 s47, 0\ns_cbranch_scc0 L_h_np1")
        self.t16_publish(L_RED, W_MOD)
        a("L_h_np1:")
        a("s_waitcnt vmcnt(0)")
        self.t16_frags()
        for k in range(6): a(f"v_mov_b32 v{70+k}, v{88+k}")
        a("L_h_hop1:")
        self.stamp(3)
        a(f"""
        v_lshlrev_b32 v14, 3, v1
        s_lshl_b32 s50, s47, 9
        s_add_u32 s50, s50, {W_MOD}
        v_add_u32 v15, s50, v14
        v_add_u32 v14, {W_MOD + 8*512}, v14  ; block 8
        v_add_u32 v16, 4608, v15
        v_add_u32 v17, 4608, v14
        """)
        L = a.label("L_hop1")
        a(f"""
        {L}:
        global_load_dwordx2 v[18:19], v15, {S_WS} sc1
        global_load_dwordx2 v[20:21], v15, {S_WS} offset:2048 sc1
        global_load_dwordx2 v[22:23], v14, {S_WS} sc1
        global_load_dwordx2 v[24:25], v16, {S_WS} sc1
        global_load_dwordx2 v[26:27], v16, {S_WS} offset:2048 sc1
        global_load_dwordx2 v[28:29], v17, {S_WS} sc1
        s_waitcnt vmcnt(0)
        s_mov_b64 s[52:53], 0
        """)
        for r in (19, 21, 23, 25, 27, 29):
            a(f"v_cmp_ne_u32 vcc, v{r}, v58\ns_or_b64 s[52:53], s[52:53], vcc")
        self.poll_guard(L, 5)
        for k in range(3):
            sa, ca = f"v{18+2*k}", f"v{24+2*k}"
            n0, n1 = f"v{70+2*k}", f"v{71+2*k}"
            self.unpk("v8", "v9", ca)
            a("v_add_f32 v8, 1.0, v8\nv_add_f32 v9, 1.0, v9")
            self.rbf2("v8", "v9", "v10")
            a(f"v_mul_f32 v8, {n0}, v8\nv_mul_f32 v9, {n1}, v9")
            self.rbf2("v8", "v9", "v10")
            self.unpk("v10", "v11", sa)
            a("v_add_f32 v8, v8, v10\nv_add_f32 v9, v9, v11")
            a(f"v_cvt_pk_bf16_f32 v{76+k}, v8, v9")
        a(f"""
        s_lshl_b32 s50, s47, 7
        s_add_u32 s50, s50, {L_XV1}
        v_add_u32 v14, s50, v13
        v_add_u32 v12, {L_XV1}, v13
        ds_write_b32 v14, v76
        ds_write_b32 v14, v77 offset:512
        ds_write_b32 v12, v78 offset:1024
        """)
        self.hsync()
        self.stamp(4)
        self.t16_mma(L_XV1, L_RED)
        self.hsync()
        a("s_cmp_eq_u32 s47, 0\ns_cbranch_scc0 L_h_np2")
        self.t16_publish(L_RED, W_Q)
        a("L_h_np2:")
        a("s_cmp_eq_u32 s47, 1\ns_cbranch_scc0 L_h_nq")
        a(f"""
        s_lshr_b32 s50, s2, 3                ; group
        s_and_b32 s51, s50, 15               ; hkv
        s_lshr_b32 s50, s50, 4               ; b
        s_lshl_b32 s51, s51, 11
        s_lshl_b32 s50, s50, 6
        s_add_u32 s50, s50, s51
        s_add_u32 s50, s50, {W_Q}
        v_lshrrev_b32 v14, 2, v1
        v_lshlrev_b32 v14, 7, v14
        v_and_b32 v15, 3, v1
        v_lshl_add_u32 v14, v15, 4, v14
        v_add_u32 v14, s50, v14
        """)
        L = a.label("L_hop2")
        a(f"""
        {L}:
        global_load_dwordx4 v[16:19], v14, {S_WS} sc1
        s_waitcnt vmcnt(0)
        v_cmp_ne_u32 vcc, v17, v58
        s_mov_b64 s[52:53], vcc
        v_cmp_ne_u32 vcc, v19, v58
        s_or_b64 s[52:53], s[52:53], vcc
        """)
        self.poll_guard(L, 6)
        a(f"""
        v_mov_b32 v17, v18
        v_lshlrev_b32 v14, 3, v1
        v_add_u32 v14, {L_QB}, v14
        ds_write_b64 v14, v[16:17]
        s_waitcnt lgkmcnt(0)
        v_mov_b32 v14, {F_Q}
        s_mov_b64 exec, 1
        ds_write_b32 v14, v61
        s_mov_b64 exec, -1
        L_h_nq:
        """)
        self.stamp(5)
        a("s_cmp_lt_u32 s46, 72\ns_cbranch_scc1 L_h_nm\ns_cmp_lt_u32 s46, 216\ns_cbranch_scc0 L_h_nm")
        self.t16_issue("m")
        a("s_waitcnt vmcnt(0)")
        self.t16_frags()
        self.t16_mma(L_XV0, L_REDB)
        self.hsync()
        a("s_cmp_eq_u32 s47, 0\ns_cbranch_scc0 L_h_nm")
        self.t16_publish(L_REDB, W_MOD)
        a("L_h_nm:")
        self.stamp(6)
        a("""
        s_cmp_eq_u32 s49, 1
        s_cbranch_scc1 L_ffn
        s_cmp_eq_u32 s49, 2
        s_cbranch_scc1 L_wo
        s_cmp_eq_u32 s49, 3
        s_cbranch_scc1 L_red
        s_barrier
        s_branch L_hdone
        """)
        self.role_ffn()
        self.role_wo()
        self.role_red()
        a("L_hdone:")
        self.stamp_flush()
        a("s_endpgm")

    def red_b3(self, v, t, op):
        self.dppop(op, v, "quad_perm:[1,0,3,2]")
        self.dppop(op, v, "quad_perm:[2,3,0,1]")
        self.dppop(op, v, "row_half_mirror")
        self.red16_32(v, t, op)

    def red_all(self, v, t, op):
        self.dppop(op, v, "quad_perm:[1,0,3,2]")
        self.dppop(op, v, "quad_perm:[2,3,0,1]")
        self.dppop(op, v, "row_half_mirror")
        self.dppop(op, v, "row_ror:8")
        self.red16_32(v, t, op)

    def ln_denom(self, mean, var, t):
        a = self.a
        self.rbf(mean, t)
        self.rbf(var, t)
        a(f"v_add_f32 {var}, {EPS:#x}, {var}")
        self.rbf(var, t)
        a(f"v_sqrt_f32 {var}, {var}")
        self.rbf(var, t)
        a(f"v_rcp_f32 {var}, {var}")

    def ln_norm(self, x0, x1, mean, rden, t):
        a = self.a
        a(f"v_sub_f32 {x0}, {x0}, {mean}\nv_sub_f32 {x1}, {x1}, {mean}")
        self.rbf2(x0, x1, t)
        a(f"v_mul_f32 {x0}, {x0}, {rden}\nv_mul_f32 {x1}, {x1}, {rden}")
        self.rbf2(x0, x1, t)

    def wait_init(self):
        a = self.a
        L = a.label("L_wi")
        a(f"""
        v_mov_b32 v14, 0
        {L}:
        """)
        self.guard(3)
        a(f"""
        global_load_dword v15, v14, {S_DBG} sc1
        s_waitcnt vmcnt(0)
        v_readfirstlane_b32 s50, v15
        s_cmp_ge_u32 s50, {NWG}
        s_cbranch_scc0 {L}
        """)

    def chunk128(self, soff, dreg):
        a = self.a
        a(f"s_mov_b32 s51, {soff}")
        for j in range(4):
            a(f"s_add_u32 m0, s72, {j*1024}")
            a(f"buffer_load_dwordx4 v6, s[32:35], s51 offen nt lds")
            if j < 3: a(f"s_add_u32 s51, s51, {8*1152}")
        a("s_waitcnt vmcnt(0)")
        for t in range(4):
            a(f"ds_read_b64_tr_b16 v[{dreg+4*t}:{dreg+4*t+1}], v7 offset:{t*32}")
            a(f"ds_read_b64_tr_b16 v[{dreg+4*t+2}:{dreg+4*t+3}], v7 offset:{t*32+512}")
        a("s_waitcnt lgkmcnt(0)")

    def addr128(self):
        a = self.a
        a("""
        v_lshrrev_b32 v8, 3, v1
        v_mul_u32_u24 v6, 1152, v8
        v_and_b32 v8, 7, v1
        v_lshl_add_u32 v6, v8, 4, v6
        v_lshrrev_b32 v8, 4, v1
        v_and_b32 v9, 15, v1
        v_lshrrev_b32 v10, 2, v9
        v_lshl_add_u32 v10, v8, 3, v10
        v_lshlrev_b32 v7, 7, v10
        v_and_b32 v11, 3, v9
        v_lshl_add_u32 v7, v11, 3, v7
        v_add_u32 v7, s72, v7
        """)

    def pair_store(self, d0, d1, vaddr, off, t):
        a = self.a
        a(f"v_cndmask_b32 {t}, {d0}, {d1}, s[56:57]")
        a(f"v_min_u32 {t}, -2, {t}")
        a(f"global_store_dword {vaddr}, {t}, {S_WS} offset:{off} sc0 sc1")

    def out_addr(self, vdst, base_s):
        a = self.a
        a(f"""
        v_bfe_u32 v8, v1, 4, 1
        v_mul_u32_u24 {vdst}, {18*128}, v8
        v_lshrrev_b32 v8, 5, v1
        v_lshlrev_b32 v8, 4, v8
        v_and_b32 v9, 15, v1
        v_add_u32 v8, v8, v9
        v_lshl_add_u32 {vdst}, v8, 2, {vdst}
        v_add_u32 {vdst}, {base_s}, {vdst}
        s_mov_b32 s56, 0
        s_mov_b32 s57, -1
        """)

    def role_wo(self):
        a = self.a
        WB = 96
        a("L_wo:")
        self.srd(32, (12, 13), 4096 * 1152)
        self.addr128()
        for k in range(3):
            L = a.label("L_wo_sk")
            if k == 2: a(f"s_cmp_lg_u32 s47, 0\ns_cbranch_scc1 {L}")
            for s in range(2):
                a(f"s_mul_i32 s50, s48, {64*1152}\ns_lshl_b32 s55, s47, 7\ns_add_u32 s50, s50, s55\ns_add_u32 s54, s50, {s*32*1152 + k*4*128}")
                self.chunk128("s54", WB + (k*2+s)*16)
            a(f"{L}:")
        a(f"""
        s_mul_i32 s50, s48, 4608
        s_add_u32 s50, s50, {W_Y}
        s_lshl_b32 s51, s47, 8
        s_add_u32 s62, s50, s51
        """)
        self.out_addr("v20", "s62")
        a(f"""
        s_lshr_b32 s50, s48, 2               ; hkv
        s_bfe_u32 s51, s48, 0x10001          ; hh
        s_and_b32 s52, s48, 1                ; half
        s_mul_i32 s50, s50, {8*PARTW}
        s_add_u32 s50, s50, {W_PART}
        v_bfe_u32 v8, v1, 4, 1
        v_mul_u32_u24 v21, {128*PARTW}, v8
        v_lshrrev_b32 v8, 5, v1
        v_mul_u32_u24 v8, {4*PARTW}, v8
        v_add_u32 v21, v21, v8
        v_add_u32 v21, s50, v21
        s_lshl_b32 s53, s51, 3
        v_add_u32 v22, s53, v21
        s_lshl_b32 s51, s51, 9
        s_lshl_b32 s52, s52, 8
        s_add_u32 s51, s51, s52
        v_and_b32 v8, 15, v1
        v_lshlrev_b32 v8, 4, v8
        v_add_u32 v21, v21, v8
        v_add_u32 v21, s51, v21              ; O address
        """)
        a(f"""
        v_bfe_u32 v8, v1, 2, 1
        v_lshlrev_b32 v23, 7, v8
        v_lshrrev_b32 v8, 4, v1
        v_lshl_add_u32 v23, v8, 4, v23
        v_add_u32 v23, {L_OB}, v23
        s_mov_b32 s54, {LOG2E:#x}
        """)
        self.wait_init()
        a("s_barrier")
        self.stamp(7)
        a("s_cmp_eq_u32 s47, 0\ns_cbranch_scc0 L_wo_np")
        L = a.label("L_hopA")
        a(f"{L}:")
        for j in range(4):
            a(f"v_add_u32 v8, {j*PARTW}, v21\nglobal_load_dwordx4 v[{32+4*j}:{35+4*j}], v8, {S_WS} sc1")
            a(f"v_add_u32 v8, {j*PARTW}, v22\nglobal_load_dwordx2 v[{48+2*j}:{49+2*j}], v8, {S_WS} offset:1024 sc1")
        a("s_waitcnt vmcnt(0)\ns_mov_b64 s[52:53], 0")
        for r in range(32, 56):
            a(f"v_cmp_eq_u32 vcc, -1, v{r}\ns_or_b64 s[52:53], s[52:53], vcc")
        self.poll_guard(L, 7)
        a("v_max3_f32 v8, v48, v50, v52\nv_max_f32 v8, v8, v54")
        self.red32("v8", "v9", "v_max_f32")
        for j in range(4):
            a(f"v_sub_f32 v{48+2*j}, v{48+2*j}, v8\nv_mul_f32 v{48+2*j}, s54, v{48+2*j}")
        for j in range(4):
            a(f"v_exp_f32 v{48+2*j}, v{48+2*j}")
        a("v_mul_f32 v10, v48, v49\nv_fmac_f32 v10, v50, v51\nv_fmac_f32 v10, v52, v53\nv_fmac_f32 v10, v54, v55")
        self.red32("v10", "v9", "v_add_f32")
        a("v_rcp_f32 v10, v10")
        for i in range(4):
            a(f"v_mul_f32 v{12+i}, v48, v{32+i}")
            for j in range(1, 4):
                a(f"v_fmac_f32 v{12+i}, v{48+2*j}, v{32+4*j+i}")
            self.red32(f"v{12+i}", "v9", "v_add_f32")
            a(f"v_mul_f32 v{12+i}, v{12+i}, v10")
        a(f"""
        v_cvt_pk_bf16_f32 v16, v12, v13
        v_cvt_pk_bf16_f32 v17, v14, v15
        v_and_b32 v8, 31, v1
        v_lshlrev_b32 v8, 3, v8
        v_add_u32 v8, {L_OB}, v8
        ds_write_b64 v8, v[16:17]
        s_waitcnt lgkmcnt(0)
        L_wo_np:
        s_barrier
        ds_read_b128 v[24:27], v23
        ds_read_b128 v[28:31], v23 offset:64
        s_waitcnt lgkmcnt(0)
        """)
        self.stamp(8)
        for k in range(3):
            L = a.label("L_wo_mk")
            if k == 2: a(f"s_cmp_lg_u32 s47, 0\ns_cbranch_scc1 {L}")
            for t in range(4):
                acc = 32 + 4 * t
                b0 = WB + (k*2) * 16 + 4 * t; b1 = WB + (k*2+1) * 16 + 4 * t
                a(f"v_mfma_f32_16x16x32_bf16 v[{acc}:{acc+3}], v[24:27], v[{b0}:{b0+3}], 0")
                a(f"v_mfma_f32_16x16x32_bf16 v[{acc}:{acc+3}], v[28:31], v[{b1}:{b1+3}], v[{acc}:{acc+3}]")
            a("s_nop 7")
            self.pair_store("v32", "v36", "v20", k * 1024, "v48")
            self.pair_store("v40", "v44", "v20", k * 1024 + 128, "v49")
            a(f"{L}:")
        self.stamp(9)
        a("s_branch L_hdone")

    def role_ffn(self):
        a = self.a
        GB = 96
        DB = 176
        a("L_ffn:")
        self.srd(32, (16, 17), 576 * 9216)
        self.srd(36, (18, 19), 576 * 9216)
        a("""
        v_lshrrev_b32 v8, 2, v1
        v_mul_u32_u24 v6, 9216, v8
        v_and_b32 v8, 3, v1
        v_lshl_add_u32 v6, v8, 4, v6
        v_lshrrev_b32 v8, 4, v1
        v_and_b32 v9, 15, v1
        v_lshrrev_b32 v10, 2, v9
        v_lshl_add_u32 v10, v8, 3, v10
        v_lshlrev_b32 v7, 6, v10
        v_and_b32 v11, 3, v9
        v_lshl_add_u32 v7, v11, 3, v7
        v_add_u32 v7, s72, v7
        """)
        for j in range(5):
            L = a.label("L_ffn_sk")
            if j == 4: a(f"s_cmp_ge_u32 s47, 2\ns_cbranch_scc1 {L}")
            a(f"s_add_u32 s50, s47, {4*j}\ns_mul_i32 s50, s50, {32*9216}\ns_lshl_b32 s51, s48, 6\ns_add_u32 s50, s50, s51\ns_add_u32 s51, s50, {16*9216}")
            a(f"s_add_u32 m0, s72, 0\nbuffer_load_dwordx4 v6, s[32:35], s50 offen nt lds")
            a(f"s_add_u32 m0, s72, 1024\nbuffer_load_dwordx4 v6, s[32:35], s51 offen nt lds")
            a(f"s_add_u32 m0, s72, 2048\nbuffer_load_dwordx4 v6, s[36:39], s50 offen nt lds")
            a(f"s_add_u32 m0, s72, 3072\nbuffer_load_dwordx4 v6, s[36:39], s51 offen nt lds")
            a("s_waitcnt vmcnt(0)")
            for t in range(4):
                d = GB + 16 * j + 4 * t
                o = (t >> 1) * 2048 + (t & 1) * 32
                a(f"ds_read_b64_tr_b16 v[{d}:{d+1}], v7 offset:{o}")
                a(f"ds_read_b64_tr_b16 v[{d+2}:{d+3}], v7 offset:{o+256}")
            a("s_waitcnt lgkmcnt(0)")
            a(f"{L}:")
        self.srd(32, (20, 21), 4608 * 1152)
        self.addr128()
        for k in range(3):
            L = a.label("L_ffn_dk")
            if k == 2: a(f"s_cmp_lg_u32 s47, 0\ns_cbranch_scc1 {L}")
            a(f"s_mul_i32 s50, s48, {32*1152}\ns_lshl_b32 s55, s47, 7\ns_add_u32 s50, s50, s55\ns_add_u32 s54, s50, {k*4*128}")
            self.chunk128("s54", DB + k * 16)
            a(f"{L}:")
        a(f"""
        s_and_b32 s50, s47, 1
        s_lshl_b32 s50, s50, 6               ; b*64
        v_add_u32 v8, 128, v1
        v_min_u32 v8, 143, v8
        v_lshrrev_b32 v9, 2, v8
        v_lshlrev_b32 v9, 7, v9
        v_and_b32 v10, 3, v8
        v_lshl_add_u32 v9, v10, 4, v9
        v_add_u32 v25, s50, v9
        v_lshrrev_b32 v9, 2, v1
        v_lshlrev_b32 v9, 7, v9
        v_and_b32 v10, 3, v1
        v_lshl_add_u32 v9, v10, 4, v9
        v_add_u32 v24, s50, v9
        v_add_u32 v26, {W_MOD + 108*128}, v24
        v_add_u32 v27, {W_MOD + 108*128}, v25
        v_add_u32 v28, {W_MOD + 144*128}, v24
        v_add_u32 v29, {W_MOD + 144*128}, v25
        """)
        L = a.label("L_ffn_pp")
        a(f"""
        {L}:
        global_load_dwordx4 v[32:35], v26, {S_WS} sc1
        global_load_dwordx4 v[36:39], v26, {S_WS} offset:2048 sc1
        global_load_dwordx4 v[40:43], v27, {S_WS} sc1
        global_load_dwordx4 v[44:47], v28, {S_WS} sc1
        global_load_dwordx4 v[48:51], v28, {S_WS} offset:2048 sc1
        global_load_dwordx4 v[52:55], v29, {S_WS} sc1
        s_waitcnt vmcnt(0)
        s_mov_b64 s[52:53], 0
        """)
        for r in range(33, 56, 2):
            a(f"v_cmp_ne_u32 vcc, v{r}, v58\ns_or_b64 s[52:53], s[52:53], vcc")
        self.poll_guard(L, 8)
        for rho in range(3):
            a(f"v_mov_b32 v{224+2*rho}, v{32+4*rho}\nv_mov_b32 v{225+2*rho}, v{34+4*rho}")
            for h in range(2):
                self.unpk("v8", "v9", f"v{44+4*rho+2*h}")
                a("v_add_f32 v8, 1.0, v8\nv_add_f32 v9, 1.0, v9")
                a(f"v_cvt_pk_bf16_f32 v{230+2*rho+h}, v8, v9")
        a(f"""
        s_and_b32 s50, s47, 1
        s_mul_i32 s51, s50, 2304
        s_add_u32 s51, s51, {W_X1}
        v_lshlrev_b32 v8, 4, v1
        v_add_u32 v20, s51, v8
        v_add_u32 v8, 128, v1
        v_min_u32 v9, 143, v8
        v_lshlrev_b32 v10, 4, v9
        v_add_u32 v21, s51, v10              ; rho 2
        s_mul_i32 s51, s50, 1152
        s_add_u32 s51, s51, {L_XV0}
        v_lshlrev_b32 v10, 3, v1
        v_add_u32 v22, s51, v10
        v_lshlrev_b32 v10, 3, v9
        v_add_u32 v23, s51, v10
        v_cmp_gt_u32 vcc, 144, v8
        v_cndmask_b32 v19, 0, 1.0, vcc
        """)
        a(f"""
        v_add_u32 v18, {L_XV0}, v5
        s_mul_i32 s50, s48, 4608
        s_add_u32 s50, s50, {W_Z}
        s_lshl_b32 s51, s47, 8
        s_add_u32 s62, s50, s51
        """)
        self.out_addr("v17", "s62")
        a(f"s_mov_b32 s54, {NLOG2E:#x}")
        self.wait_init()
        a("s_barrier")
        self.stamp(7)
        a("s_cmp_lt_u32 s47, 2\ns_cbranch_scc0 L_ffn_nx")
        L = a.label("L_hopC")
        a(f"""
        {L}:
        global_load_dwordx4 v[32:35], v20, {S_WS} sc1
        global_load_dwordx4 v[36:39], v20, {S_WS} offset:1024 sc1
        global_load_dwordx4 v[40:43], v21, {S_WS} sc1
        s_waitcnt vmcnt(0)
        s_mov_b64 s[52:53], 0
        """)
        for r in range(32, 44):
            a(f"v_cmp_eq_u32 vcc, -1, v{r}\ns_or_b64 s[52:53], s[52:53], vcc")
        self.poll_guard(L, 9)
        a("v_add_f32 v8, v40, v41\nv_add_f32 v9, v42, v43\nv_add_f32 v8, v8, v9\nv_mul_f32 v8, v8, v19")
        for r in range(32, 40): a(f"v_add_f32 v8, v8, v{r}")
        self.red_all("v8", "v9", "v_add_f32")
        a(f"v_mul_f32 v8, {INV576:#x}, v8")
        a("v_sub_f32 v10, v40, v8\nv_mul_f32 v11, v10, v10")
        for r in range(41, 44): a(f"v_sub_f32 v10, v{r}, v8\nv_fmac_f32 v11, v10, v10")
        a("v_mul_f32 v11, v11, v19")
        for r in range(32, 40): a(f"v_sub_f32 v10, v{r}, v8\nv_fmac_f32 v11, v10, v10")
        self.red_all("v11", "v9", "v_add_f32")
        a(f"v_mul_f32 v11, {INV576:#x}, v11")
        self.ln_denom("v8", "v11", "v9")
        for rho in range(3):
            for h in range(2):
                x0, x1 = f"v{32+4*rho+2*h}", f"v{33+4*rho+2*h}"
                self.ln_norm(x0, x1, "v8", "v11", "v9")
                self.unpk("v12", "v13", f"v{230+2*rho+h}")
                a(f"v_mul_f32 {x0}, {x0}, v12\nv_mul_f32 {x1}, {x1}, v13")
                self.rbf2(x0, x1, "v9")
                self.unpk("v12", "v13", f"v{224+2*rho+h}")
                a(f"v_add_f32 {x0}, {x0}, v12\nv_add_f32 {x1}, {x1}, v13")
                a(f"v_cvt_pk_bf16_f32 v{44+2*rho+h}, {x0}, {x1}")
        a("""
        ds_write_b64 v22, v[44:45]
        ds_write_b64 v22, v[46:47] offset:512
        ds_write_b64 v23, v[48:49]
        s_waitcnt lgkmcnt(0)
        L_ffn_nx:
        s_barrier
        """)
        self.stamp(8)
        for j in range(5):
            a(f"ds_read_b128 v[{32+4*j}:{35+4*j}], v18 offset:{j*256}")
        a("s_waitcnt lgkmcnt(0)")
        L = a.label("L_ffn_m5")
        for j in range(5):
            if j == 4: a(f"s_cmp_ge_u32 s47, 2\ns_cbranch_scc1 {L}")
            for t in range(4):
                acc = 64 + 4 * t; b = GB + 16 * j + 4 * t
                c = "0" if j == 0 else f"v[{acc}:{acc+3}]"
                a(f"v_mfma_f32_16x16x32_bf16 v[{acc}:{acc+3}], v[{32+4*j}:{35+4*j}], v[{b}:{b+3}], {c}")
        a(f"{L}:")
        a("s_nop 7")
        a(f"""
        v_and_b32 v8, 31, v1
        v_lshlrev_b32 v8, 2, v8
        s_lshl_b32 s50, s47, 9
        s_add_u32 s50, s50, {L_RED2}
        v_add_u32 v8, s50, v8
        ds_write_b32 v8, v64
        ds_write_b32 v8, v68 offset:128
        ds_write_b32 v8, v72 offset:256
        ds_write_b32 v8, v76 offset:384
        s_waitcnt lgkmcnt(0)
        s_barrier
        v_bfe_u32 v8, v1, 4, 1
        v_lshlrev_b32 v8, 7, v8
        v_lshrrev_b32 v9, 5, v1
        v_lshlrev_b32 v9, 4, v9
        v_and_b32 v10, 15, v1
        v_add_u32 v9, v9, v10
        v_lshl_add_u32 v8, v9, 2, v8
        v_add_u32 v8, {L_RED2}, v8
        """)
        for w in range(4):
            a(f"ds_read_b32 v{32+w}, v8 offset:{w*512}\nds_read_b32 v{36+w}, v8 offset:{w*512+256}")
        a("""
        s_waitcnt lgkmcnt(0)
        v_add_f32 v32, v32, v33
        v_add_f32 v34, v34, v35
        v_add_f32 v36, v36, v37
        v_add_f32 v38, v38, v39
        v_add_f32 v32, v32, v34
        v_add_f32 v36, v36, v38
        """)
        self.rbf2("v32", "v36", "v9")
        a("""
        v_mul_f32 v10, s54, v32
        v_exp_f32 v10, v10
        v_add_f32 v10, 1.0, v10
        v_rcp_f32 v10, v10
        v_mul_f32 v32, v32, v10
        """)
        self.rbf("v32", "v9")
        a(f"""
        v_mul_f32 v32, v32, v36
        v_cvt_pk_bf16_f32 v32, v32, v32
        s_lshl_b32 s50, s47, 7
        s_add_u32 s50, s50, {L_GU}
        v_lshlrev_b32 v8, 1, v1              ; b*64 + f*2
        v_add_u32 v8, s50, v8
        ds_write_b16 v8, v32
        v_bfe_u32 v8, v1, 2, 1
        v_lshlrev_b32 v8, 6, v8
        v_lshrrev_b32 v9, 4, v1
        v_lshl_add_u32 v8, v9, 4, v8
        v_add_u32 v8, s50, v8
        s_waitcnt lgkmcnt(0)
        ds_read_b128 v[24:27], v8
        s_waitcnt lgkmcnt(0)
        """)
        for k in range(3):
            L = a.label("L_ffn_mk")
            if k == 2: a(f"s_cmp_lg_u32 s47, 0\ns_cbranch_scc1 {L}")
            for t in range(4):
                acc = 32 + 4 * t; b = DB + 16 * k + 4 * t
                a(f"v_mfma_f32_16x16x32_bf16 v[{acc}:{acc+3}], v[24:27], v[{b}:{b+3}], 0")
            a("s_nop 7")
            self.pair_store("v32", "v36", "v17", k * 1024, "v48")
            self.pair_store("v40", "v44", "v17", k * 1024 + 128, "v49")
            a(f"{L}:")
        self.stamp(9)
        a("s_branch L_hdone")

    def red_phase(self, wbase, nblk_total, red, tag):
        a = self.a
        nj = (nblk_total + 3) // 4
        full = nblk_total // 4
        a(f"""
        s_lshl_b32 s50, s48, 7
        s_add_u32 s50, s50, {wbase}
        s_mul_i32 s51, s47, {8*4608}
        s_add_u32 s50, s50, s51
        v_lshrrev_b32 v8, 3, v1
        v_mul_u32_u24 v9, 4608, v8
        v_and_b32 v8, 7, v1
        v_lshl_add_u32 v9, v8, 4, v9
        v_add_u32 v20, s50, v9
        """)
        rem = nblk_total - 4 * full
        Lp = a.label(f"L_poll{tag}")
        a(f"{Lp}:")
        for j in range(nj):
            Ls = None
            if j >= full:
                Ls = a.label("L_rsk")
                a(f"v_mov_b32 v{32+4*j}, 0\nv_mov_b32 v{33+4*j}, 0\nv_mov_b32 v{34+4*j}, 0\nv_mov_b32 v{35+4*j}, 0")
                a(f"s_cmp_ge_u32 s47, {rem}\ns_cbranch_scc1 {Ls}")
            a(f"v_add_u32 v9, {j*32*4608}, v20\nglobal_load_dwordx4 v[{32+4*j}:{35+4*j}], v9, {S_WS} sc1")
            if Ls: a(f"{Ls}:")
        a("s_waitcnt vmcnt(0)\ns_mov_b64 s[52:53], 0")
        for r in range(32, 32 + 4 * nj):
            a(f"v_cmp_eq_u32 vcc, -1, v{r}\ns_or_b64 s[52:53], s[52:53], vcc")
        self.poll_guard(Lp, 10 if tag == "B" else 11)
        for i in range(4):
            for j in range(1, nj):
                a(f"v_add_f32 v{32+i}, v{32+i}, v{32+4*j+i}")
        for i in range(4):
            self.dppop("v_add_f32", f"v{32+i}", "row_ror:8")
        for i in range(4):
            self.red16_32(f"v{32+i}", "v9", "v_add_f32")
        a(f"""
        v_and_b32 v8, 7, v1
        v_lshlrev_b32 v8, 4, v8
        s_lshl_b32 s50, s47, 7
        s_add_u32 s50, s50, {red}
        v_add_u32 v8, s50, v8
        s_mov_b64 exec, 0xff
        ds_write_b128 v8, v[32:35]
        s_mov_b64 exec, -1
        s_waitcnt lgkmcnt(0)
        s_barrier
        v_and_b32 v9, 31, v1
        v_lshlrev_b32 v9, 2, v9
        v_add_u32 v9, {red}, v9
        ds_read_b32 v8, v9
        ds_read_b32 v10, v9 offset:128
        ds_read_b32 v11, v9 offset:256
        ds_read_b32 v12, v9 offset:384
        s_waitcnt lgkmcnt(0)
        v_add_f32 v8, v8, v10
        v_add_f32 v11, v11, v12
        v_add_f32 v8, v8, v11
        """)

    def role_red(self):
        a = self.a
        a("L_red:")
        a(f"""
        s_cmp_ge_u32 s48, 18
        s_cselect_b32 s60, 1, 0              ; b
        s_mul_i32 s50, s60, 18
        s_sub_u32 s61, s48, s50              ; m
        v_and_b32 v24, 31, v1
        s_lshl_b32 s50, s61, 5
        v_add_u32 v24, s50, v24              ; d
        s_mul_i32 s51, s60, 1152
        v_lshlrev_b32 v25, 1, v24
        v_add_u32 v25, s51, v25
        global_load_ushort v26, v25, {S_X}
        ; granule address: line t = type*36 + d/16 ; granule b*8 + (d%16)/2
        v_lshrrev_b32 v27, 4, v24
        v_lshlrev_b32 v27, 7, v27
        v_bfe_u32 v28, v24, 1, 3
        v_lshl_add_u32 v27, v28, 3, v27
        s_lshl_b32 s51, s60, 6
        v_add_u32 v27, s51, v27
        v_add_u32 v28, {W_MOD + 72*128}, v27
        v_add_u32 v29, {W_MOD + 180*128}, v27
        """)
        L = a.label("L_red_pp")
        a(f"""
        {L}:
        global_load_dwordx2 v[14:15], v28, {S_WS} sc1
        global_load_dwordx2 v[16:17], v29, {S_WS} sc1
        s_waitcnt vmcnt(0)
        v_cmp_ne_u32 vcc, v15, v58
        s_mov_b64 s[52:53], vcc
        v_cmp_ne_u32 vcc, v17, v58
        s_or_b64 s[52:53], s[52:53], vcc
        """)
        self.poll_guard(L, 12)
        a("""
        v_and_b32 v8, 1, v24
        v_cmp_eq_u32 vcc, 1, v8
        v_lshlrev_b32 v9, 16, v14
        v_and_b32 v10, 0xffff0000, v14
        v_cndmask_b32 v21, v9, v10, vcc
        v_lshlrev_b32 v9, 16, v16
        v_and_b32 v10, 0xffff0000, v16
        v_cndmask_b32 v22, v9, v10, vcc
        v_lshlrev_b32 v23, 16, v26
        """)
        self.wait_init()
        a("s_barrier")
        self.stamp(7)
        self.red_phase(W_Y, 8, L_RED, "B")
        self.rbf("v8", "v9")
        a("v_mul_f32 v8, v21, v8")
        self.rbf("v8", "v9")
        a("v_add_f32 v8, v23, v8")
        self.rbf("v8", "v9")
        a(f"""
        v_mov_b32 v19, v8                    ; x1
        s_cmp_eq_u32 s47, 0
        s_cbranch_scc0 L_red_n1
        s_lshl_b32 s50, s48, 7
        s_add_u32 s50, s50, {W_X1}
        v_lshlrev_b32 v9, 2, v1
        v_add_u32 v9, s50, v9
        s_mov_b32 s50, -1
        s_mov_b32 s51, 0
        s_mov_b64 exec, s[50:51]
        global_store_dword v9, v19, {S_WS} sc0 sc1
        s_mov_b64 exec, -1
        L_red_n1:
        """)
        self.stamp(8)
        self.red_phase(W_Z, 18, L_REDB, "D")
        self.rbf("v8", "v9")
        a("v_mul_f32 v8, v22, v8")
        self.rbf("v8", "v9")
        a("v_add_f32 v8, v19, v8")
        a(f"""
        s_cmp_eq_u32 s47, 0
        s_cbranch_scc0 L_red_n2
        v_mov_b32_dpp v9, v8 quad_perm:[1,0,3,2] row_mask:0xf bank_mask:0xf
        v_cvt_pk_bf16_f32 v10, v8, v9
        s_mul_i32 s50, s60, 1152
        s_lshl_b32 s51, s61, 6
        s_add_u32 s50, s50, s51
        v_lshlrev_b32 v9, 1, v1
        v_add_u32 v9, s50, v9
        s_mov_b32 s50, 0x55555555
        s_mov_b32 s51, 0
        s_mov_b64 exec, s[50:51]
        global_store_dword v9, v10, {S_OUT}
        s_cmp_eq_u32 s48, 0
        s_cbranch_scc0 L_red_n3
        s_mov_b64 exec, 1
        v_mov_b32 v9, 0
        global_store_dword v9, v58, {S_WS} sc0 sc1
        L_red_n3:
        s_mov_b64 exec, -1
        L_red_n2:
        """)
        self.stamp(9)


if __name__ == "__main__":
    out = sys.argv[1] if len(sys.argv) > 1 else "main.s"
    stamps = "--stamps" in sys.argv
    g = Gen(stamps=stamps)
    txt = g.build()
    open(out, "w").write(txt)
    print("written", out, len(txt.splitlines()), "lines")
```

```python
import sys
from asmlib import *

NWG = 256
D_RING = 4
RINGW = D_RING * 8192
NITEMS = 1024
L_RING = 0
L_STG = 4 * RINGW
STGW = 5120
L_XV0 = L_STG + 4 * STGW
L_XV1 = L_XV0 + 2304
L_QB = L_XV1 + 2304
L_MRG = L_QB + 512
MRGW = 1056
L_RED = L_MRG + 4 * MRGW
L_REDB = L_RED + 512
L_FLAG = L_REDB + 512
L_OB = L_FLAG + 64
L_GU = L_OB + 256
L_END = L_GU + 512
L_RED2 = L_XV1
LDS_BYTES = 163840
assert L_END <= LDS_BYTES
F_HS = L_FLAG
F_Q = L_FLAG + 4
F_SC = L_FLAG + 8
F_H = L_FLAG + 12
F_RED = L_FLAG + 16
F_PUB = L_FLAG + 20
W_EPOCH = 0
W_MOD = 0x1000
W_Q = 0x8000
W_PART = 0x20000
PARTW = 1152
W_Y = 0x70000
W_X1 = 0xC0000
W_Z = 0xD0000
W_CNT = 0x180000
W_STAMP = 0x200000
SPIN_LIMIT = 400000
LOG2E = 0x3fb8aa3b
NLOG2E = 0xbfb8aa3b
SCALE = 0x3db504f3
EPS = 0x3727c5ac
INV576 = 0x3ae38e39

S_X, S_K, S_V, S_WQ, S_WO = "s[4:5]", (6, 7), (8, 9), (10, 11), (12, 13)
S_WS = "s[30:31]"; S_DBG = "s[28:29]"; S_OUT = "s[26:27]"; S_C = "s[22:23]"


class Gen:
    def __init__(self, stamps=False, opts=None):
        self.a = Asm()
        self.stamps = stamps
        self.o = dict(delta=2, dyn=True, pw=8, pol="nt", codepf=True)
        self.o.update(opts or {})
        self.nst = 0

    def pstamp(self, k):
        if self.stamps and self.o.get("probe") == "start":
            self.a(f"s_memrealtime s[{80+2*k}:{81+2*k}]")

    def stamp(self, k):
        if self.o.get("probe") in ("start", "hop1") and k in (7, 8, 9) and getattr(self, "in_role", False): return
        if self.stamps:
            self.a(f"s_memrealtime s[{80+2*k}:{81+2*k}]")

    def stamp_flush(self):
        if not self.stamps: return
        a = self.a
        a("s_waitcnt vmcnt(0) lgkmcnt(0)")
        a("s_mov_b64 exec, 1")
        a(f"s_lshl_b32 s44, s2, 3\ns_add_u32 s44, s44, s3\ns_lshl_b32 s44, s44, 7\ns_add_u32 s44, s44, {W_STAMP}")
        a("v_mov_b32 v2, s44")
        for k in range(10):
            a(f"v_mov_b32 v4, s{80+2*k}\nv_mov_b32 v5, s{81+2*k}\nglobal_store_dwordx2 v2, v[4:5], {S_WS} offset:{8*k}\ns_nop 1")
        a(f"v_mov_b32 v4, s76\nv_mov_b32 v5, s77\nglobal_store_dwordx2 v2, v[4:5], {S_WS} offset:80\ns_nop 1")
        a(f"v_mov_b32 v4, s78\nv_mov_b32 v5, s79\nglobal_store_dwordx2 v2, v[4:5], {S_WS} offset:88\ns_nop 1")
        a("s_waitcnt vmcnt(0)")

    def mark(self, r):
        if self.stamps: self.a(f"s_mov_b32 s{r}, s73")

    def srd(self, r, base, nrec):
        self.a(f"s_mov_b32 s{r}, s{base[0]}\ns_and_b32 s{r+1}, s{base[1]}, 0xffff\ns_mov_b32 s{r+2}, {nrec}\ns_mov_b32 s{r+3}, 0x20000")

    def red16_32(self, v, t, op):
        self.a(f"v_mov_b32 {t}, {v}\nv_permlane16_swap_b32 {t}, {v}\n{op} {v}, {v}, {t}")
        self.a(f"v_mov_b32 {t}, {v}\nv_permlane32_swap_b32 {t}, {v}\n{op} {v}, {v}, {t}")

    def red32(self, v, t, op):
        self.a(f"v_mov_b32 {t}, {v}\nv_permlane32_swap_b32 {t}, {v}\n{op} {v}, {v}, {t}")

    def dppop(self, op, v, ctrl):
        self.a(f"{op}_dpp {v}, {v}, {v} {ctrl} row_mask:0xf bank_mask:0xf")

    def rbf(self, v, t):
        self.a(f"v_cvt_pk_bf16_f32 {t}, {v}, {v}\nv_lshlrev_b32 {v}, 16, {t}")

    def rbf2(self, x, y, t):
        self.a(f"v_cvt_pk_bf16_f32 {t}, {x}, {y}\nv_lshlrev_b32 {x}, 16, {t}\nv_and_b32 {y}, 0xffff0000, {t}")

    def unpk(self, lo, hi, src):
        self.a(f"v_lshlrev_b32 {lo}, 16, {src}\nv_and_b32 {hi}, 0xffff0000, {src}")

    def guard(self, code):
        self.a(f"s_add_u32 s73, s73, 1\ns_cmp_gt_u32 s73, {SPIN_LIMIT}\ns_movk_i32 s74, {code}\ns_cbranch_scc1 L_fail")

    def hsync(self):
        a = self.a
        L = a.label("L_hs")
        a("s_waitcnt lgkmcnt(0)")
        a("s_mov_b64 exec, 1")
        a("ds_add_u32 v60, v61")
        a("s_mov_b64 exec, -1")
        a("s_add_u32 s70, s70, 4")
        a(f"{L}:")
        self.guard(1)
        a("ds_read_b32 v62, v60")
        a("s_waitcnt lgkmcnt(0)")
        a("v_readfirstlane_b32 s71, v62")
        a("s_cmp_ge_u32 s71, s70")
        a(f"s_cbranch_scc0 {L}")

    def build(self):
        a = self.a
        a(HEADER)
        a(f"; @launch grid=({NWG},1,1) block=(512,1,1) lds={LDS_BYTES}")
        a('.amdgcn_target "amdgcn-amd-amdhsa--gfx950"\n.text')
        a(kernel_prologue(KNAME))
        a(f"""
        s_cmp_ge_u32 s2, {NWG}
        s_cbranch_scc1 L_exit
        s_load_dwordx16 s[4:19], s[0:1], 0
        s_load_dwordx8 s[20:27], s[0:1], 64
        s_load_dwordx4 s[28:31], s[0:1], 96
        """)
        self.stamp(0)
        a("""
        v_lshrrev_b32 v1, 6, v0
        v_readfirstlane_b32 s3, v1
        v_and_b32 v1, 63, v0
        s_mov_b32 s73, 0
        s_lshr_b32 s62, s2, 3
        s_add_u32 s63, s2, s62
        s_and_b32 s63, s63, 7                ; cls
        s_lshl_b32 s64, s62, 1
        s_mov_b32 s65, 0
        s_mov_b32 s66, 0
        s_cmp_ge_u32 s63, 6
        s_cbranch_scc0 L_c1
        s_mov_b32 s65, 2
        s_add_u32 s66, s64, s63
        s_sub_u32 s66, s66, 6
        s_branch L_c2
        L_c1:
        s_cmp_ge_u32 s63, 4
        s_cbranch_scc0 L_c2
        s_cmp_lt_u32 s62, 27
        s_cbranch_scc0 L_c2
        s_mov_b32 s65, 1
        s_add_u32 s66, s64, s63
        s_sub_u32 s66, s66, 4
        L_c2:
        s_cmp_lt_u32 s3, 4
        s_cbranch_scc1 L_streamer
        """)
        self.helper()
        a("L_streamer:")
        self.streamer()
        a(f"""
        L_fail:
        s_waitcnt vmcnt(0) lgkmcnt(0)
        s_mov_b64 exec, 1
        s_lshl_b32 s75, s2, 8
        s_or_b32 s74, s74, s75
        s_lshl_b32 s75, s3, 4
        s_or_b32 s74, s74, s75
        v_mov_b32 v2, 32
        v_mov_b32 v3, s74
        global_store_dword v2, v3, {S_DBG} sc0 sc1
        s_waitcnt vmcnt(0)
        L_exit:
        s_endpgm""")
        lines, probs = fix_hazards(a.lines, True)
        a.lines = lines
        a(kernel_desc(KNAME, 256))
        return a.text()

    def streamer(self):
        a = self.a
        if self.o["codepf"]:
            a(f"""
            s_cmp_eq_u32 s3, 3
            s_cbranch_scc0 L_nopf
            s_getpc_b64 s[40:41]
            L_pc:
            s_sub_u32 s40, s40, L_pc-{KNAME}
            s_subb_u32 s41, s41, 0
            v_lshlrev_b32 v20, 7, v1
            """)
            for kk in range(4):
                a(f"v_min_u32 v21, L_exit-{KNAME}, v20\nglobal_load_dword v200, v21, s[40:41]\nv_add_u32 v20, 8192, v20")
            a("L_nopf:")
        a("""
        v_lshrrev_b32 v20, 4, v1            ; gq / G
        v_and_b32 v21, 15, v1               ; p / r / i
        v_xor_b32 v22, v21, v20
        v_lshlrev_b32 v22, 4, v22           ; (p^g)*16
        v_lshlrev_b32 v23, 8, v20           ; g*256
        """)
        for j in range(4):
            a(f"v_xor_b32 v24, {64*j}, v22\nv_add_u32 v{2+j}, v23, v24")
        for j in range(2):
            a(f"v_or_b32 v24, {4*j}, v20\nv_lshlrev_b32 v24, 1, v24\nv_xor_b32 v24, v21, v24\nv_lshlrev_b32 v24, 4, v24\nv_add_u32 v{6+j}, v23, v24")
        a(f"s_mul_i32 s45, s3, {RINGW}")
        a("v_lshlrev_b32 v25, 8, v21\nv_add_u32 v25, s45, v25     ; ring + r*256")
        for j in range(4):
            a(f"v_xor_b32 v24, {64*j}, v22\nv_add_u32 v{8+j}, v25, v24")
        a("""
        v_lshrrev_b32 v26, 2, v21
        v_lshl_add_u32 v26, v20, 2, v26     ; key
        v_and_b32 v27, 7, v26               ; kappa
        v_lshlrev_b32 v27, 5, v27           ; kappa*32
        v_lshlrev_b32 v26, 8, v26           ; key*256
        v_and_b32 v28, 3, v21
        v_lshl_add_u32 v26, v28, 3, v26
        v_add_u32 v26, s45, v26
        v_add_u32 v26, 4096, v26
        """)
        for u in range(8):
            a(f"v_xor_b32 v24, {32*u}, v27\nv_add_u32 v{12+u}, v26, v24")
        R = D_RING; DL = self.o["delta"]; DYN = self.o["dyn"]; NA = 1 if DYN else 0; POL = self.o["pol"]
        POLK = self.o.get("polk", POL).replace("def", ""); POLV = self.o.get("polv", POL).replace("def", "")
        assert DL in (1, 2, 4)
        a(f"""
        s_lshr_b32 s46, s2, 3               ; group
        s_and_b32 s47, s2, 7                ; member
        s_lshl_b32 s47, s47, 2
        s_add_u32 s44, s47, s3              ; worker 0..31
        s_lshl_b32 s48, s46, 8
        s_add_u32 s48, s48, {W_CNT}
        v_mov_b32 v119, s48
        s_waitcnt lgkmcnt(0)
        s_lshl_b32 s48, s46, 22
        s_add_u32 s32, s6, s48
        s_addc_u32 s33, s7, 0
        s_and_b32 s33, s33, 0xffff
        s_mov_b32 s34, 0x400000
        s_mov_b32 s35, 0x20000
        s_add_u32 s36, s8, s48
        s_addc_u32 s37, s9, 0
        s_and_b32 s37, s37, 0xffff
        s_mov_b32 s38, 0x400000
        s_mov_b32 s39, 0x20000
        """)
        self.pstamp(8)
        a("s_barrier")
        self.stamp(1)
        gate = self.o.get("gate", "")
        Lg = a.label("L_gate"); Lgd = a.label("L_gated")
        a(f"s_mov_b32 s58, {F_PUB}\ns_mov_b32 s59, 4\ns_cmp_eq_u32 s65, 2\ns_cselect_b32 s58, {F_Q}, s58\ns_cselect_b32 s59, 1, s59")
        if gate == "q":
            a(f"s_mov_b32 s58, {F_Q}\ns_mov_b32 s59, 1")
        else:
            a(f"s_cmp_eq_u32 s65, 0\ns_cbranch_scc1 {Lgd}")
        a(f"v_mov_b32 v115, s58\n{Lg}:")
        self.guard(15)
        a(f"s_sleep 1\nds_read_b32 v114, v115\ns_waitcnt lgkmcnt(0)\nv_readfirstlane_b32 s53, v114\ns_cmp_ge_u32 s53, s59\ns_cbranch_scc0 {Lg}\n{Lgd}:")

        def issue_half(slot, half, soff):
            if half == 0:
                a(f"s_add_u32 m0, s45, {slot*8192}")
                for j in range(4):
                    a(f"buffer_load_dwordx4 v{2+j}, s[32:35], {soff} offen offset:{j*1024} {POLK} lds")
            else:
                a(f"s_add_u32 m0, s45, {slot*8192+4096}")
                for j in range(4):
                    a(f"buffer_load_dwordx4 v{6+(j&1)}, s[36:39], {soff} offen offset:{j*1024} {POLV} lds")
        def issue(slot, soff):
            issue_half(slot, 0, soff); issue_half(slot, 1, soff)
        PW = self.o["pw"]
        for sl in range(R):
            a(f"s_add_u32 s49, s44, {sl*32}\ns_lshl_b32 s49, s49, 12")
            for h in range(2):
                n_before = sl * 8 + h * 4
                if n_before + 4 > PW and PW < 32:
                    Lw = a.label("L_pw")
                    a(f"s_cmp_eq_u32 s65, 0\ns_cbranch_scc0 {Lw}\ns_waitcnt vmcnt({PW-4})\n{Lw}:")
                if sl == 1 and h == 1: self.stamp(5)
                issue_half(sl, h, "s49")
        self.stamp(6)
        if self.stamps:
            a("s_waitcnt vmcnt(0)")
            self.stamp(7)
        a(f"""
        s_mov_b32 s50, {SCALE:#x}
        s_mov_b32 s51, {LOG2E:#x}
        s_mov_b32 s52, {NLOG2E:#x}
        v_mov_b32 v112, 0xff800000
        v_mov_b32 v113, 0
        """)
        for r in range(80, 112): a(f"v_mov_b32 v{r}, 0")
        for e in range(DL):
            a(f"s_add_u32 s53, s44, {(R+DL+e)*32}\nv_mov_b32 v{120+e}, s53")
        Lq = a.label("L_wq")
        a(f"""
        v_mov_b32 v115, {F_Q}
        {Lq}:
        """)
        self.guard(4)
        a(f"""
        s_sleep 1
        ds_read_b32 v114, v115
        s_waitcnt lgkmcnt(0)
        v_readfirstlane_b32 s53, v114
        s_cmp_eq_u32 s53, 1
        s_cbranch_scc0 {Lq}
        """)
        self.stamp(2)
        a(f"""
        v_and_b32 v114, 1, v1
        v_lshlrev_b32 v114, 8, v114
        v_lshrrev_b32 v115, 4, v1
        v_lshl_add_u32 v114, v115, 4, v114
        v_add_u32 v114, {L_QB}, v114
        """)
        for j in range(4):
            a(f"ds_read_b128 v[{20+4*j}:{23+4*j}], v114 offset:{64*j}")
        a("s_waitcnt lgkmcnt(0)")
        a("s_mov_b32 s54, 0          ; round\ns_mov_b32 s56, 0          ; draining\ns_mov_b32 s57, 0")
        a("L_sloop:")
        per = 8 + NA
        for sl in range(R):
            Lgo = a.label("L_go"); Lw0 = a.label("L_w0"); Lw1 = a.label("L_w1"); Lw2 = a.label("L_w2")
            first = (R - 1 - sl) * 8 + min(sl, DL) * 8
            steady = (DL - 1) * per
            a(f"s_cmp_lg_u32 s56, 0\ns_cbranch_scc1 {Lw0}\ns_cmp_eq_u32 s54, 0\ns_cbranch_scc1 {Lw1}")
            second = None
            if sl < DL - 1:
                second = (DL - 1 - sl) * 8 + sl * per
                a(f"s_cmp_eq_u32 s54, 1\ns_cbranch_scc1 {Lw2}")
            a(f"s_waitcnt vmcnt({steady})\ns_branch {Lgo}")
            if second is not None: a(f"{Lw2}:\ns_waitcnt vmcnt({second})\ns_branch {Lgo}")
            a(f"{Lw1}:\ns_waitcnt vmcnt({first})\ns_branch {Lgo}")
            a(f"{Lw0}:\ns_waitcnt vmcnt(0)\n{Lgo}:")
            off = sl * 8192
            for j in range(4):
                a(f"ds_read_b128 v[{36+4*j}:{39+4*j}], v{8+j} offset:{off}")
            for u in range(8):
                a(f"ds_read_b64_tr_b16 v[{52+2*u}:{53+2*u}], v{12+u} offset:{off}")
            a("s_waitcnt lgkmcnt(8)")
            for j in range(4):
                c = "0" if j == 0 else "v[68:71]"
                a(f"v_mfma_f32_16x16x32_bf16 v[68:71], v[{36+4*j}:{39+4*j}], v[{20+4*j}:{23+4*j}], {c}")
            a("s_waitcnt lgkmcnt(0)")
            Ln = a.label("L_ni"); Lf = a.label("L_fi"); Ld = a.label("L_dr")
            e = sl % DL
            a(f"s_cmp_lg_u32 s56, 0\ns_cbranch_scc1 {Ln}\ns_cmp_eq_u32 s54, 0\ns_cbranch_scc1 {Lf}")
            a(f"v_readfirstlane_b32 s53, v{120+e}\ns_cmp_ge_u32 s53, {NITEMS}\ns_cbranch_scc1 {Ld}")
            if DYN:
                a(f"v_mov_b32 v{120+e}, 1\ns_mov_b64 exec, 1\nglobal_atomic_add v{120+e}, v119, v{120+e}, {S_WS} sc0 sc1\ns_mov_b64 exec, -1")
            else:
                a(f"v_add_u32 v{120+e}, {DL*32}, v{120+e}")
            tgt = (sl + DL) % R
            a("s_lshl_b32 s49, s53, 12")
            issue(tgt, "s49")
            a(f"s_branch {Ln}")
            a(f"{Ld}:\ns_mov_b32 s56, 1\ns_mov_b32 s57, {DL}\ns_branch {Ln}")
            a(f"{Lf}:")
            if sl < DL:
                a(f"s_add_u32 s49, s44, {(R+sl)*32}\ns_lshl_b32 s49, s49, 12")
                issue(sl, "s49")
            a(f"{Ln}:")
            a("s_nop 5")
            a("""
            v_cvt_pk_bf16_f32 v76, v68, v69
            v_cvt_pk_bf16_f32 v77, v70, v71
            v_lshlrev_b32 v72, 16, v76
            v_and_b32 v73, 0xffff0000, v76
            v_lshlrev_b32 v74, 16, v77
            v_and_b32 v75, 0xffff0000, v77
            v_mul_f32 v72, s50, v72
            v_mul_f32 v73, s50, v73
            v_mul_f32 v74, s50, v74
            v_mul_f32 v75, s50, v75
            v_cvt_pk_bf16_f32 v76, v72, v73
            v_cvt_pk_bf16_f32 v77, v74, v75
            v_lshlrev_b32 v72, 16, v76
            v_and_b32 v73, 0xffff0000, v76
            v_lshlrev_b32 v74, 16, v77
            v_and_b32 v75, 0xffff0000, v77
            v_max3_f32 v114, v72, v73, v74
            v_max_f32 v114, v114, v75
            """)
            self.red16_32("v114", "v115", "v_max_f32")
            Ls = a.label("L_nr")
            a(f"""
            v_max_f32 v114, v114, v112
            v_cmp_gt_f32 vcc, v114, v112
            s_cbranch_vccz {Ls}
            v_sub_f32 v116, v112, v114
            v_mul_f32 v116, s51, v116
            v_exp_f32 v116, v116
            v_mov_b32 v112, v114
            v_mul_f32 v113, v113, v116
            """)
            for r in range(80, 112, 2):
                a(f"v_pk_mul_f32 v[{r}:{r+1}], v[{r}:{r+1}], v[116:117] op_sel_hi:[1,0]")
            a(f"{Ls}:")
            a("""
            v_mul_f32 v118, s52, v112
            v_fma_f32 v72, v72, s51, v118
            v_fma_f32 v73, v73, s51, v118
            v_fma_f32 v74, v74, s51, v118
            v_fma_f32 v75, v75, s51, v118
            v_exp_f32 v72, v72
            v_exp_f32 v73, v73
            v_exp_f32 v74, v74
            v_exp_f32 v75, v75
            v_cvt_pk_bf16_f32 v78, v72, v73
            v_cvt_pk_bf16_f32 v79, v74, v75
            v_add_f32 v72, v72, v73
            v_add_f32 v74, v74, v75
            v_add_f32 v72, v72, v74
            v_add_f32 v113, v113, v72
            """)
            for u in range(8):
                a(f"v_mfma_f32_16x16x16_bf16 v[{80+4*u}:{83+4*u}], v[{52+2*u}:{53+2*u}], v[78:79], v[{80+4*u}:{83+4*u}]")
            Lc = a.label("L_ct")
            a(f"s_cmp_eq_u32 s56, 0\ns_cbranch_scc1 {Lc}\ns_sub_u32 s57, s57, 1\ns_cmp_eq_u32 s57, 0\ns_cbranch_scc1 L_sdrained\n{Lc}:")
        a(f"s_add_u32 s54, s54, 1\ns_branch L_sloop")
        a("L_sdrained:")
        self.stamp(3)
        self.red16_32("v113", "v115", "v_add_f32")
        a(f"""
        s_mul_i32 s53, s3, {MRGW}
        s_add_u32 s53, s53, {L_MRG}
        v_and_b32 v114, 1, v1
        v_lshlrev_b32 v115, 9, v114          ; head*512
        v_lshrrev_b32 v116, 4, v1
        v_lshl_add_u32 v115, v116, 4, v115   ; + G*16
        v_add_u32 v115, s53, v115
        v_lshlrev_b32 v114, 3, v114
        v_add_u32 v114, s53, v114            ; head*8
        v_mov_b32 v116, v112
        v_mov_b32 v117, v113
        s_mov_b32 s56, 0x00030003
        s_mov_b32 s57, 0x00030003
        s_mov_b64 exec, s[56:57]
        """)
        for u in range(8):
            a(f"ds_write_b128 v115, v[{80+4*u}:{83+4*u}] offset:{64*u}")
        a(f"""
        s_mov_b64 exec, 3
        ds_write_b64 v114, v[116:117] offset:1024
        s_mov_b64 exec, -1
        s_waitcnt lgkmcnt(0)
        s_barrier
        s_cmp_lg_u32 s3, 0
        s_cbranch_scc1 L_sdone
        """)
        a(f"""
        v_lshrrev_b32 v2, 5, v1              ; head
        v_and_b32 v3, 31, v1                 ; dq
        v_lshlrev_b32 v4, 9, v2
        v_lshl_add_u32 v4, v3, 4, v4
        v_add_u32 v4, {L_MRG}, v4
        v_lshlrev_b32 v5, 3, v2
        v_add_u32 v5, {L_MRG+1024}, v5
        """)
        for w in range(4):
            a(f"ds_read_b64 v[{8+2*w}:{9+2*w}], v5 offset:{w*MRGW}")
        for w in range(4):
            a(f"ds_read_b128 v[{16+4*w}:{19+4*w}], v4 offset:{w*MRGW}")
        a("""
        s_waitcnt lgkmcnt(4)
        v_max3_f32 v6, v8, v10, v12
        v_max_f32 v6, v6, v14               ; M
        """)
        for w in range(4):
            a(f"v_sub_f32 v{8+2*w}, v{8+2*w}, v6\nv_mul_f32 v{8+2*w}, s51, v{8+2*w}")
        for w in range(4):
            a(f"v_exp_f32 v{8+2*w}, v{8+2*w}")
        a("""
        v_mul_f32 v7, v8, v9
        v_fmac_f32 v7, v10, v11
        v_fmac_f32 v7, v12, v13
        v_fmac_f32 v7, v14, v15             ; L
        s_waitcnt lgkmcnt(0)
        """)
        for i in range(4):
            a(f"v_mul_f32 v{32+i}, v8, v{16+i}")
            for w in range(1, 4):
                a(f"v_fmac_f32 v{32+i}, v{8+2*w}, v{16+4*w+i}")
        for i in range(4):
            a(f"v_min_u32 v{32+i}, -2, v{32+i}")
        a(f"""
        v_min_u32 v6, -2, v6
        v_min_u32 v7, -2, v7
        s_mul_i32 s53, s2, {PARTW}
        s_add_u32 s53, s53, {W_PART}
        v_lshlrev_b32 v2, 4, v1
        v_add_u32 v2, s53, v2
        global_store_dwordx4 v2, v[32:35], {S_WS} sc0 sc1
        v_lshrrev_b32 v3, 5, v1
        v_lshlrev_b32 v3, 3, v3
        v_add_u32 v3, s53, v3
        s_mov_b32 s56, 1
        s_mov_b32 s57, 1
        s_mov_b64 exec, s[56:57]
        global_store_dwordx2 v3, v[6:7], {S_WS} offset:1024 sc0 sc1
        s_mov_b64 exec, -1
        """)
        self.stamp(4)
        a("L_sdone:")
        self.stamp_flush()
        a("s_endpgm")

    def t64_issue(self, base, stride, nrec):
        a = self.a
        self.srd(32, base, nrec)
        a(f"s_mul_i32 s50, s47, {32*stride}\ns_lshl_b32 s51, s66, 7\ns_add_u32 s50, s50, s51")
        a(f"s_mul_i32 s52, s47, {RINGW}")
        L = a.label("L_t64i")
        for j in range(5):
            if j == 4: a(f"s_cmp_ge_u32 s47, 2\ns_cbranch_scc1 {L}")
            for i in range(4):
                a(f"s_add_u32 m0, s52, {j*4096 + i*1024}")
                a(f"buffer_load_dwordx4 v{3 - (i & 1)}, s[32:35], s50 offen nt lds")
                if i < 3: a(f"s_add_u32 s50, s50, {8*stride}")
            if j < 4: a(f"s_add_u32 s50, s50, {(128-24)*stride}")
        a(f"{L}:")

    def t64_frags(self):
        a = self.a
        a("s_waitcnt vmcnt(0)")
        for j in range(5):
            for t in range(4):
                d = 96 + 16 * j + 4 * t
                a(f"ds_read_b64_tr_b16 v[{d}:{d+1}], v{52+t} offset:{j*4096}")
                a(f"ds_read_b64_tr_b16 v[{d+2}:{d+3}], v{52+t} offset:{j*4096 + 512}")

    def t64_mma_publish(self, xv, wbase):
        a = self.a
        a(f"v_add_u32 v6, {xv}, v5")
        for j in range(5):
            a(f"ds_read_b128 v[{32+4*j}:{35+4*j}], v6 offset:{j*256}")
        a("s_waitcnt lgkmcnt(0)")
        L = a.label("L_t64m")
        for j in range(5):
            if j == 4: a(f"s_cmp_ge_u32 s47, 2\ns_cbranch_scc1 {L}")
            for t in range(4):
                acc = 64 + 4 * t; b = 96 + 16 * j + 4 * t
                c = "0" if j == 0 else f"v[{acc}:{acc+3}]"
                a(f"v_mfma_f32_16x16x32_bf16 v[{acc}:{acc+3}], v[{32+4*j}:{35+4*j}], v[{b}:{b+3}], {c}")
        a(f"{L}:")
        a(f"""
        v_and_b32 v7, 31, v1
        v_lshlrev_b32 v7, 2, v7
        s_lshl_b32 s50, s47, 9
        s_add_u32 s50, s50, {L_MRG}
        v_add_u32 v8, s50, v7
        s_nop 3
        ds_write_b32 v8, v64
        ds_write_b32 v8, v68 offset:128
        ds_write_b32 v8, v72 offset:256
        ds_write_b32 v8, v76 offset:384
        """)
        self.lds_signal(F_RED)
        a(f"""
        s_lshl_b32 s50, s47, 7
        s_add_u32 s50, s50, {L_MRG}
        v_add_u32 v7, s50, v7
        s_lshl_b32 s50, s66, 2
        s_add_u32 s50, s50, s47
        s_lshl_b32 s50, s50, 7
        s_add_u32 s50, s50, {wbase}
        v_lshrrev_b32 v6, 1, v1
        v_lshlrev_b32 v6, 3, v6
        v_add_u32 v6, s50, v6
        v_mov_b32 v11, v58
        """)
        self.lds_wait(F_RED, 4, 17)
        a(f"""
        ds_read_b32 v8, v7
        ds_read_b32 v9, v7 offset:512
        ds_read_b32 v12, v7 offset:1024
        ds_read_b32 v14, v7 offset:1536
        s_mov_b32 s50, 0x55555555
        s_mov_b32 s51, 0
        s_waitcnt lgkmcnt(0)
        v_add_f32 v8, v8, v9
        v_add_f32 v12, v12, v14
        v_add_f32 v8, v8, v12
        v_mov_b32_dpp v9, v8 quad_perm:[1,0,3,2] row_mask:0xf bank_mask:0xf
        v_cvt_pk_bf16_f32 v10, v8, v9
        s_mov_b64 exec, s[50:51]
        global_store_dwordx2 v6, v[10:11], {S_WS} sc0 sc1
        s_mov_b64 exec, -1
        """)

    def lds_signal(self, flag):
        a = self.a
        a(f"s_waitcnt lgkmcnt(0)\nv_mov_b32 v62, {flag}\ns_mov_b64 exec, 1\nds_add_u32 v62, v61\ns_mov_b64 exec, -1")

    def lds_wait(self, flag, count, code):
        a = self.a
        L = a.label("L_lw")
        a(f"v_mov_b32 v63, {flag}\n{L}:")
        self.guard(code)
        a(f"ds_read_b32 v62, v63\ns_waitcnt lgkmcnt(0)\nv_readfirstlane_b32 s71, v62\ns_cmp_ge_u32 s71, {count}\ns_cbranch_scc0 {L}")

    def poll_guard(self, L, code=2):
        self.guard(code)
        self.a(f"s_cmp_lg_u64 s[52:53], 0\ns_cbranch_scc1 {L}")

    def helper(self):
        a = self.a
        R = D_RING; DL = self.o["delta"]
        a(f"""
        s_sub_u32 s47, s3, 4
        v_lshrrev_b32 v8, 3, v1
        v_and_b32 v9, 7, v1
        v_bfe_u32 v10, v1, 4, 1
        v_lshlrev_b32 v10, 1, v10
        v_xor_b32 v9, v9, v10
        v_xor_b32 v12, 4, v9
        v_lshlrev_b32 v9, 4, v9
        v_lshlrev_b32 v12, 4, v12
        v_mov_b32 v14, 0
        ; v13 = vXo = b*1152 + (l>>4)*32 + (l&7)*4
        v_bfe_u32 v10, v1, 3, 1
        v_mul_u32_u24 v13, 1152, v10
        v_lshrrev_b32 v10, 4, v1
        v_lshl_add_u32 v13, v10, 5, v13
        v_and_b32 v10, 7, v1
        v_lshl_add_u32 v13, v10, 2, v13
        s_lshl_b32 s50, s47, 7
        v_add_u32 v15, s50, v13
        s_waitcnt lgkmcnt(0)
        global_load_dword v58, v14, {S_WS} sc1
        s_cmp_eq_u32 s65, 1
        s_cbranch_scc1 L_im
        s_cmp_eq_u32 s65, 2
        s_cbranch_scc0 L_idone
        """)
        a(f"""
        global_load_dword v19, v15, {S_X}
        global_load_dword v20, v15, {S_X} offset:512
        global_load_dword v21, v13, {S_X} offset:1024
        """)
        for bb in range(9):
            a(f"global_load_dword v{22+bb}, v13, {S_X} offset:{128*bb}")
        a(f"""
        s_lshl_b32 s46, s66, 2
        s_add_u32 s46, s46, s47              ; tq
        s_and_b32 s50, s46, 14
        s_cmp_eq_u32 s50, 0
        s_cbranch_scc0 L_i1n
        s_and_b32 s50, s46, 1
        s_lshl_b32 s50, s50, 4
        s_lshr_b32 s51, s46, 4
        s_add_u32 s50, s50, s51
        s_lshl_b32 s50, s50, 8
        s_add_u32 s50, s50, {W_CNT}
        v_mov_b32 v10, s50
        v_mov_b32 v11, {(R + 2*DL) * 32}
        s_mov_b64 exec, 1
        global_store_dword v10, v11, {S_WS} sc0 sc1
        s_mov_b64 exec, -1
        L_i1n:
        v_lshl_add_u32 v3, v8, 13, v9
        v_lshl_add_u32 v2, v8, 13, v12
        """)
        self.t64_issue((10, 11), 8192, 576 * 8192)
        a("s_branch L_idone\nL_im:")
        a(f"""
        global_load_dword v16, v15, {S_C}
        global_load_dword v17, v15, {S_C} offset:512
        global_load_dword v18, v13, {S_C} offset:1024
        v_mul_u32_u24 v3, 6912, v8
        v_add_u32 v2, v3, v12
        v_add_u32 v3, v3, v9
        """)
        self.t64_issue((24, 25), 6912, 576 * 6912)
        a("L_idone:")
        self.pstamp(8)
        a(f"""
        v_mov_b32 v61, 1
        s_cmp_eq_u32 s47, 2
        s_cbranch_scc0 L_h_nb
        v_mov_b32 v44, {L_FLAG}
        v_mov_b32 v46, 0
        v_mov_b32 v47, 0
        v_mov_b32 v48, 0
        v_mov_b32 v49, 0
        s_mov_b64 exec, 1
        ds_write_b128 v44, v[46:49]
        ds_write_b128 v44, v[46:49] offset:16
        s_mov_b64 exec, -1
        s_waitcnt lgkmcnt(0)
        L_h_nb:
        s_barrier
        """)
        self.stamp(1)
        a(f"""
        v_lshrrev_b32 v8, 4, v1              ; G
        v_and_b32 v9, 15, v1                 ; i
        v_lshrrev_b32 v10, 2, v9
        v_lshl_add_u32 v10, v8, 3, v10       ; 8G + (i>>2)
        v_and_b32 v11, 3, v9
        v_lshlrev_b32 v11, 3, v11            ; (i&3)*8
        v_lshl_add_u32 v4, v10, 7, v11
        s_mul_i32 s50, s47, {RINGW}
        v_add_u32 v4, s50, v4
        v_bfe_u32 v10, v1, 3, 1
        v_bfe_u32 v11, v1, 4, 1
        v_lshl_add_u32 v10, v11, 1, v10      ; f
        v_lshlrev_b32 v10, 5, v10            ; f*32
        v_add_u32 v52, v4, v10
        v_xor_b32 v11, 32, v10
        v_add_u32 v53, v4, v11
        v_xor_b32 v11, 64, v10
        v_add_u32 v54, v4, v11
        v_xor_b32 v11, 96, v10
        v_add_u32 v55, v4, v11
        v_bfe_u32 v12, v1, 2, 1
        v_mul_u32_u24 v5, 1152, v12
        v_lshl_add_u32 v5, v8, 4, v5
        s_lshl_b32 s50, s47, 6
        v_add_u32 v5, s50, v5
        s_mul_i32 s50, s47, {STGW}
        s_add_u32 s72, s50, {L_STG}
        s_lshr_b32 s50, s2, 4
        s_add_u32 s50, s50, s2
        s_and_b32 s50, s50, 7
        s_lshl_b32 s50, s50, 5
        s_lshr_b32 s51, s2, 3
        s_add_u32 s51, s51, s50              ; j
        s_mov_b32 s49, 1
        s_mov_b32 s48, s51
        s_cmp_lt_u32 s51, 144
        s_cbranch_scc1 L_h_rd
        s_mov_b32 s49, 2
        s_sub_u32 s48, s51, 144
        s_cmp_lt_u32 s51, 208
        s_cbranch_scc1 L_h_rd
        s_mov_b32 s49, 3
        s_sub_u32 s48, s51, 208
        s_cmp_lt_u32 s51, 244
        s_cbranch_scc1 L_h_rd
        s_mov_b32 s49, 0
        L_h_rd:
        s_cmp_eq_u32 s65, 0
        s_cbranch_scc1 L_early
        s_cmp_eq_u32 s65, 2
        s_cbranch_scc1 L_qcls
        """)
        a("s_cmp_ge_u32 s47, 2\ns_cbranch_scc1 L_mw16\ns_waitcnt vmcnt(20)\ns_branch L_mwd\nL_mw16:\ns_waitcnt vmcnt(16)\nL_mwd:")
        self.stamp(2)
        a("v_add_u32 v58, 1, v58            ; tag")
        a(f"s_mov_b32 s54, {NLOG2E:#x}")
        for k in range(3):
            src = f"v{16+k}"
            self.unpk("v8", "v9", src)
            a("""
            v_mul_f32 v10, s54, v8
            v_mul_f32 v11, s54, v9
            v_exp_f32 v10, v10
            v_exp_f32 v11, v11
            v_add_f32 v10, 1.0, v10
            v_add_f32 v11, 1.0, v11
            v_rcp_f32 v10, v10
            v_rcp_f32 v11, v11
            v_mul_f32 v8, v8, v10
            v_mul_f32 v9, v9, v11
            """)
            a(f"v_cvt_pk_bf16_f32 {src}, v8, v9")
        a(f"""
        v_add_u32 v14, {L_XV0}, v15
        v_add_u32 v12, {L_XV0}, v13
        ds_write_b32 v14, v16
        ds_write_b32 v14, v17 offset:512
        ds_write_b32 v12, v18 offset:1024
        """)
        self.lds_signal(F_SC)
        self.t64_frags()
        self.lds_wait(F_SC, 4, 13)
        self.stamp(3)
        self.t64_mma_publish(L_XV0, W_MOD)
        self.lds_signal(F_PUB)
        self.stamp(4)
        a("s_branch L_common")
        a("L_qcls:")
        a("s_cmp_ge_u32 s47, 2\ns_cbranch_scc1 L_qw16\ns_waitcnt vmcnt(20)\ns_branch L_qwd\nL_qw16:\ns_waitcnt vmcnt(16)\nL_qwd:")
        self.stamp(2)
        a("v_add_u32 v58, 1, v58            ; tag")
        for bb in range(9):
            self.unpk(f"v{64+2*bb}", f"v{65+2*bb}", f"v{22+bb}")
        a("v_add_f32 v8, v64, v65")
        for r in range(66, 82): a(f"v_add_f32 v8, v8, v{r}")
        self.red_b3("v8", "v9", "v_add_f32")
        a(f"v_mul_f32 v8, {INV576:#x}, v8")
        a("v_sub_f32 v10, v64, v8\nv_mul_f32 v11, v10, v10")
        for r in range(65, 82): a(f"v_sub_f32 v10, v{r}, v8\nv_fmac_f32 v11, v10, v10")
        self.red_b3("v11", "v9", "v_add_f32")
        a(f"v_mul_f32 v11, {INV576:#x}, v11    ; var")
        self.ln_denom("v8", "v11", "v9")
        for k in range(3):
            self.unpk(f"v{80+2*k}", f"v{81+2*k}", f"v{19+k}")
            self.ln_norm(f"v{80+2*k}", f"v{81+2*k}", "v8", "v11", "v9")
        self.t64_frags()
        self.stamp(3)
        a(f"""
        v_lshlrev_b32 v14, 3, v1
        s_lshl_b32 s50, s47, 9
        s_add_u32 s50, s50, {W_MOD}
        v_add_u32 v15, s50, v14
        v_add_u32 v14, {W_MOD + 8*512}, v14  ; block 8
        v_add_u32 v16, 4608, v15
        v_add_u32 v17, 4608, v14
        """)
        self.mark(76)
        if self.stamps and self.o.get("probe") == "hop1":
            a("s_memrealtime s[94:95]\ns_mov_b32 s75, 0")
        L = a.label("L_hop1")
        a(f"""
        {L}:
        global_load_dwordx2 v[18:19], v15, {S_WS} sc1
        global_load_dwordx2 v[20:21], v15, {S_WS} offset:2048 sc1
        global_load_dwordx2 v[22:23], v14, {S_WS} sc1
        global_load_dwordx2 v[24:25], v16, {S_WS} sc1
        global_load_dwordx2 v[26:27], v16, {S_WS} offset:2048 sc1
        global_load_dwordx2 v[28:29], v17, {S_WS} sc1
        s_waitcnt vmcnt(0)
        s_mov_b64 s[52:53], 0
        """)
        if self.stamps and self.o.get("probe") == "hop1":
            Lp = a.label("L_pr")
            a(f"s_cmp_eq_u32 s75, 0\ns_cbranch_scc0 {Lp}\ns_memrealtime s[96:97]\ns_mov_b32 s75, 1\n{Lp}:\ns_memrealtime s[98:99]")
        for r in (19, 21, 23, 25, 27, 29):
            a(f"v_cmp_ne_u32 vcc, v{r}, v58\ns_or_b64 s[52:53], s[52:53], vcc")
        self.poll_guard(L, 5)
        self.mark(77)
        for k in range(3):
            sa, ca = f"v{18+2*k}", f"v{24+2*k}"
            n0, n1 = f"v{80+2*k}", f"v{81+2*k}"
            self.unpk("v8", "v9", ca)
            a("v_add_f32 v8, 1.0, v8\nv_add_f32 v9, 1.0, v9")
            self.rbf2("v8", "v9", "v10")
            a(f"v_mul_f32 v8, {n0}, v8\nv_mul_f32 v9, {n1}, v9")
            self.rbf2("v8", "v9", "v10")
            self.unpk("v10", "v11", sa)
            a("v_add_f32 v8, v8, v10\nv_add_f32 v9, v9, v11")
            a(f"v_cvt_pk_bf16_f32 v{86+k}, v8, v9")
        a(f"""
        s_lshl_b32 s50, s47, 7
        s_add_u32 s50, s50, {L_XV1}
        v_add_u32 v14, s50, v13
        v_add_u32 v12, {L_XV1}, v13
        ds_write_b32 v14, v86
        ds_write_b32 v14, v87 offset:512
        ds_write_b32 v12, v88 offset:1024
        """)
        self.lds_signal(F_H)
        self.lds_wait(F_H, 4, 14)
        self.stamp(4)
        self.t64_mma_publish(L_XV1, W_Q)
        a("s_branch L_common")
        a("L_early:\ns_waitcnt vmcnt(0)")
        self.stamp(2)
        a("v_add_u32 v58, 1, v58            ; tag")
        a("L_common:")
        self.stamp(5)
        a("s_cmp_eq_u32 s47, 2\ns_cbranch_scc0 L_h_nq")
        a(f"""
        s_lshr_b32 s50, s2, 3                ; group
        s_and_b32 s51, s50, 15               ; hkv
        s_lshr_b32 s50, s50, 4               ; b
        s_lshl_b32 s51, s51, 11
        s_lshl_b32 s50, s50, 6
        s_add_u32 s50, s50, s51
        s_add_u32 s50, s50, {W_Q}
        v_lshrrev_b32 v14, 2, v1
        v_lshlrev_b32 v14, 7, v14
        v_and_b32 v15, 3, v1
        v_lshl_add_u32 v14, v15, 4, v14
        v_add_u32 v14, s50, v14
        """)
        self.mark(78)
        L = a.label("L_hop2")
        a(f"""
        {L}:
        global_load_dwordx4 v[16:19], v14, {S_WS} sc1
        s_waitcnt vmcnt(0)
        v_cmp_ne_u32 vcc, v17, v58
        s_mov_b64 s[52:53], vcc
        v_cmp_ne_u32 vcc, v19, v58
        s_or_b64 s[52:53], s[52:53], vcc
        """)
        self.poll_guard(L, 6)
        self.mark(79)
        a(f"""
        v_mov_b32 v17, v18
        v_lshlrev_b32 v14, 3, v1
        v_add_u32 v14, {L_QB}, v14
        ds_write_b64 v14, v[16:17]
        s_waitcnt lgkmcnt(0)
        v_mov_b32 v14, {F_Q}
        s_mov_b64 exec, 1
        ds_write_b32 v14, v61
        s_mov_b64 exec, -1
        L_h_nq:
        """)
        a(f"""
        s_cmp_eq_u32 s47, 3
        s_cbranch_scc0 L_h_s4
        v_mov_b32 v40, -1
        v_mov_b32 v41, -1
        v_mov_b32 v42, -1
        v_mov_b32 v43, -1
        v_lshlrev_b32 v44, 4, v1
        s_mul_i32 s50, s2, {PARTW}
        s_add_u32 s50, s50, {W_PART}
        v_add_u32 v45, s50, v44
        global_store_dwordx4 v45, v[40:43], {S_WS} sc0 sc1
        s_mov_b64 exec, 0xff
        global_store_dwordx4 v45, v[40:43], {S_WS} offset:1024 sc0 sc1
        s_mov_b64 exec, -1
        s_cmp_eq_u32 s49, 3
        s_cbranch_scc0 L_h_s2
        s_lshl_b32 s50, s48, 7
        s_add_u32 s50, s50, {W_X1}
        v_add_u32 v45, s50, v44
        s_mov_b64 exec, 0xff
        global_store_dwordx4 v45, v[40:43], {S_WS} sc0 sc1
        s_mov_b64 exec, -1
        s_branch L_h_s3
        L_h_s2:
        s_cmp_eq_u32 s49, 0
        s_cbranch_scc1 L_h_s3
        s_mov_b32 s51, {W_Z}
        s_cmp_eq_u32 s49, 2
        s_cselect_b32 s51, {W_Y}, s51
        s_mul_i32 s50, s48, 4608
        s_add_u32 s50, s50, s51
        v_add_u32 v45, s50, v44
        global_store_dwordx4 v45, v[40:43], {S_WS} sc0 sc1
        global_store_dwordx4 v45, v[40:43], {S_WS} offset:1024 sc0 sc1
        global_store_dwordx4 v45, v[40:43], {S_WS} offset:2048 sc0 sc1
        global_store_dwordx4 v45, v[40:43], {S_WS} offset:3072 sc0 sc1
        v_add_u32 v45, 4096, v45
        s_mov_b32 s50, -1
        s_mov_b32 s51, 0
        s_mov_b64 exec, s[50:51]
        global_store_dwordx4 v45, v[40:43], {S_WS} sc0 sc1
        s_mov_b64 exec, -1
        L_h_s3:
        s_waitcnt vmcnt(0)
        s_mov_b64 exec, 1
        v_mov_b32 v14, 0
        global_atomic_add v14, v61, {S_DBG} sc1
        s_mov_b64 exec, -1
        L_h_s4:
        """)
        if self.o.get("hgate", 1):
            self.lds_wait(F_Q, 1, 16)
        self.stamp(6)
        a("""
        s_cmp_eq_u32 s49, 1
        s_cbranch_scc1 L_ffn
        s_cmp_eq_u32 s49, 2
        s_cbranch_scc1 L_wo
        s_cmp_eq_u32 s49, 3
        s_cbranch_scc1 L_red
        s_barrier
        s_branch L_hdone
        """)
        self.in_role = True
        self.role_ffn()
        self.role_wo()
        self.role_red()
        a("L_hdone:")
        self.stamp_flush()
        a("s_endpgm")

    def red_b3(self, v, t, op):
        self.dppop(op, v, "quad_perm:[1,0,3,2]")
        self.dppop(op, v, "quad_perm:[2,3,0,1]")
        self.dppop(op, v, "row_half_mirror")
        self.red16_32(v, t, op)

    def red_all(self, v, t, op):
        self.dppop(op, v, "quad_perm:[1,0,3,2]")
        self.dppop(op, v, "quad_perm:[2,3,0,1]")
        self.dppop(op, v, "row_half_mirror")
        self.dppop(op, v, "row_ror:8")
        self.red16_32(v, t, op)

    def ln_denom(self, mean, var, t):
        a = self.a
        self.rbf(mean, t)
        self.rbf(var, t)
        a(f"v_add_f32 {var}, {EPS:#x}, {var}")
        self.rbf(var, t)
        a(f"v_sqrt_f32 {var}, {var}")
        self.rbf(var, t)
        a(f"v_rcp_f32 {var}, {var}")

    def ln_norm(self, x0, x1, mean, rden, t):
        a = self.a
        a(f"v_sub_f32 {x0}, {x0}, {mean}\nv_sub_f32 {x1}, {x1}, {mean}")
        self.rbf2(x0, x1, t)
        a(f"v_mul_f32 {x0}, {x0}, {rden}\nv_mul_f32 {x1}, {x1}, {rden}")
        self.rbf2(x0, x1, t)

    def wait_init(self):
        a = self.a
        L = a.label("L_wi")
        a(f"""
        v_mov_b32 v14, 0
        {L}:
        """)
        self.guard(3)
        a(f"""
        global_load_dword v15, v14, {S_DBG} sc1
        s_waitcnt vmcnt(0)
        v_readfirstlane_b32 s50, v15
        s_cmp_ge_u32 s50, {NWG}
        s_cbranch_scc0 {L}
        """)

    def chunk128(self, soff, dreg):
        a = self.a
        a(f"s_mov_b32 s51, {soff}")
        for j in range(4):
            a(f"s_add_u32 m0, s72, {j*1024}")
            a(f"buffer_load_dwordx4 v6, s[32:35], s51 offen nt lds")
            if j < 3: a(f"s_add_u32 s51, s51, {8*1152}")
        a("s_waitcnt vmcnt(0)")
        for t in range(4):
            a(f"ds_read_b64_tr_b16 v[{dreg+4*t}:{dreg+4*t+1}], v7 offset:{t*32}")
            a(f"ds_read_b64_tr_b16 v[{dreg+4*t+2}:{dreg+4*t+3}], v7 offset:{t*32+512}")
        a("s_waitcnt lgkmcnt(0)")

    def addr128(self):
        a = self.a
        a("""
        v_lshrrev_b32 v8, 3, v1
        v_mul_u32_u24 v6, 1152, v8
        v_and_b32 v8, 7, v1
        v_lshl_add_u32 v6, v8, 4, v6
        v_lshrrev_b32 v8, 4, v1
        v_and_b32 v9, 15, v1
        v_lshrrev_b32 v10, 2, v9
        v_lshl_add_u32 v10, v8, 3, v10
        v_lshlrev_b32 v7, 7, v10
        v_and_b32 v11, 3, v9
        v_lshl_add_u32 v7, v11, 3, v7
        v_add_u32 v7, s72, v7
        """)

    def pair_store(self, d0, d1, vaddr, off, t):
        a = self.a
        a(f"v_cndmask_b32 {t}, {d0}, {d1}, s[56:57]")
        a(f"v_min_u32 {t}, -2, {t}")
        a(f"global_store_dword {vaddr}, {t}, {S_WS} offset:{off} sc0 sc1")

    def out_addr(self, vdst, base_s):
        a = self.a
        a(f"""
        v_bfe_u32 v8, v1, 4, 1
        v_mul_u32_u24 {vdst}, {18*128}, v8
        v_lshrrev_b32 v8, 5, v1
        v_lshlrev_b32 v8, 4, v8
        v_and_b32 v9, 15, v1
        v_add_u32 v8, v8, v9
        v_lshl_add_u32 {vdst}, v8, 2, {vdst}
        v_add_u32 {vdst}, {base_s}, {vdst}
        s_mov_b32 s56, 0
        s_mov_b32 s57, -1
        """)

    def role_wo(self):
        a = self.a
        WB = 96
        a("L_wo:")
        self.srd(32, (12, 13), 4096 * 1152)
        self.addr128()
        for k in range(3):
            L = a.label("L_wo_sk")
            if k == 2: a(f"s_cmp_lg_u32 s47, 0\ns_cbranch_scc1 {L}")
            for s in range(2):
                a(f"s_mul_i32 s50, s48, {64*1152}\ns_lshl_b32 s55, s47, 7\ns_add_u32 s50, s50, s55\ns_add_u32 s54, s50, {s*32*1152 + k*4*128}")
                self.chunk128("s54", WB + (k*2+s)*16)
            a(f"{L}:")
        a(f"""
        s_mul_i32 s50, s48, 4608
        s_add_u32 s50, s50, {W_Y}
        s_lshl_b32 s51, s47, 8
        s_add_u32 s62, s50, s51
        """)
        self.out_addr("v20", "s62")
        a(f"""
        s_lshr_b32 s50, s48, 2               ; hkv
        s_bfe_u32 s51, s48, 0x10001          ; hh
        s_and_b32 s52, s48, 1                ; half
        s_mul_i32 s50, s50, {8*PARTW}
        s_add_u32 s50, s50, {W_PART}
        v_bfe_u32 v8, v1, 4, 1
        v_mul_u32_u24 v21, {128*PARTW}, v8
        v_lshrrev_b32 v8, 5, v1
        v_mul_u32_u24 v8, {4*PARTW}, v8
        v_add_u32 v21, v21, v8
        v_add_u32 v21, s50, v21
        s_lshl_b32 s53, s51, 3
        v_add_u32 v22, s53, v21
        s_lshl_b32 s51, s51, 9
        s_lshl_b32 s52, s52, 8
        s_add_u32 s51, s51, s52
        v_and_b32 v8, 15, v1
        v_lshlrev_b32 v8, 4, v8
        v_add_u32 v21, v21, v8
        v_add_u32 v21, s51, v21              ; O address
        """)
        a(f"""
        v_bfe_u32 v8, v1, 2, 1
        v_lshlrev_b32 v23, 7, v8
        v_lshrrev_b32 v8, 4, v1
        v_lshl_add_u32 v23, v8, 4, v23
        v_add_u32 v23, {L_OB}, v23
        s_mov_b32 s54, {LOG2E:#x}
        """)
        self.wait_init()
        a("s_barrier")
        self.stamp(7)
        a("s_cmp_eq_u32 s47, 0\ns_cbranch_scc0 L_wo_np")
        L = a.label("L_hopA")
        a(f"{L}:")
        for j in range(4):
            a(f"v_add_u32 v8, {j*PARTW}, v21\nglobal_load_dwordx4 v[{32+4*j}:{35+4*j}], v8, {S_WS} sc1")
            a(f"v_add_u32 v8, {j*PARTW}, v22\nglobal_load_dwordx2 v[{48+2*j}:{49+2*j}], v8, {S_WS} offset:1024 sc1")
        a("s_waitcnt vmcnt(0)\ns_mov_b64 s[52:53], 0")
        for r in range(32, 56):
            a(f"v_cmp_eq_u32 vcc, -1, v{r}\ns_or_b64 s[52:53], s[52:53], vcc")
        self.poll_guard(L, 7)
        a("v_max3_f32 v8, v48, v50, v52\nv_max_f32 v8, v8, v54")
        self.red32("v8", "v9", "v_max_f32")
        for j in range(4):
            a(f"v_sub_f32 v{48+2*j}, v{48+2*j}, v8\nv_mul_f32 v{48+2*j}, s54, v{48+2*j}")
        for j in range(4):
            a(f"v_exp_f32 v{48+2*j}, v{48+2*j}")
        a("v_mul_f32 v10, v48, v49\nv_fmac_f32 v10, v50, v51\nv_fmac_f32 v10, v52, v53\nv_fmac_f32 v10, v54, v55")
        self.red32("v10", "v9", "v_add_f32")
        a("v_rcp_f32 v10, v10")
        for i in range(4):
            a(f"v_mul_f32 v{12+i}, v48, v{32+i}")
            for j in range(1, 4):
                a(f"v_fmac_f32 v{12+i}, v{48+2*j}, v{32+4*j+i}")
            self.red32(f"v{12+i}", "v9", "v_add_f32")
            a(f"v_mul_f32 v{12+i}, v{12+i}, v10")
        a(f"""
        v_cvt_pk_bf16_f32 v16, v12, v13
        v_cvt_pk_bf16_f32 v17, v14, v15
        v_and_b32 v8, 31, v1
        v_lshlrev_b32 v8, 3, v8
        v_add_u32 v8, {L_OB}, v8
        ds_write_b64 v8, v[16:17]
        s_waitcnt lgkmcnt(0)
        L_wo_np:
        s_barrier
        ds_read_b128 v[24:27], v23
        ds_read_b128 v[28:31], v23 offset:64
        s_waitcnt lgkmcnt(0)
        """)
        self.stamp(8)
        for k in range(3):
            L = a.label("L_wo_mk")
            if k == 2: a(f"s_cmp_lg_u32 s47, 0\ns_cbranch_scc1 {L}")
            for t in range(4):
                acc = 32 + 4 * t
                b0 = WB + (k*2) * 16 + 4 * t; b1 = WB + (k*2+1) * 16 + 4 * t
                a(f"v_mfma_f32_16x16x32_bf16 v[{acc}:{acc+3}], v[24:27], v[{b0}:{b0+3}], 0")
                a(f"v_mfma_f32_16x16x32_bf16 v[{acc}:{acc+3}], v[28:31], v[{b1}:{b1+3}], v[{acc}:{acc+3}]")
            a("s_nop 7")
            self.pair_store("v32", "v36", "v20", k * 1024, "v48")
            self.pair_store("v40", "v44", "v20", k * 1024 + 128, "v49")
            a(f"{L}:")
        self.stamp(9)
        a("s_branch L_hdone")

    def role_ffn(self):
        a = self.a
        GB = 96
        DB = 176
        a("L_ffn:")
        self.srd(32, (16, 17), 576 * 9216)
        self.srd(36, (18, 19), 576 * 9216)
        a("""
        v_lshrrev_b32 v8, 2, v1
        v_mul_u32_u24 v6, 9216, v8
        v_and_b32 v8, 3, v1
        v_lshl_add_u32 v6, v8, 4, v6
        v_lshrrev_b32 v8, 4, v1
        v_and_b32 v9, 15, v1
        v_lshrrev_b32 v10, 2, v9
        v_lshl_add_u32 v10, v8, 3, v10
        v_lshlrev_b32 v7, 6, v10
        v_and_b32 v11, 3, v9
        v_lshl_add_u32 v7, v11, 3, v7
        v_add_u32 v7, s72, v7
        """)
        for j in range(5):
            L = a.label("L_ffn_sk")
            if j == 4: a(f"s_cmp_ge_u32 s47, 2\ns_cbranch_scc1 {L}")
            a(f"s_add_u32 s50, s47, {4*j}\ns_mul_i32 s50, s50, {32*9216}\ns_lshl_b32 s51, s48, 6\ns_add_u32 s50, s50, s51\ns_add_u32 s51, s50, {16*9216}")
            a(f"s_add_u32 m0, s72, 0\nbuffer_load_dwordx4 v6, s[32:35], s50 offen nt lds")
            a(f"s_add_u32 m0, s72, 1024\nbuffer_load_dwordx4 v6, s[32:35], s51 offen nt lds")
            a(f"s_add_u32 m0, s72, 2048\nbuffer_load_dwordx4 v6, s[36:39], s50 offen nt lds")
            a(f"s_add_u32 m0, s72, 3072\nbuffer_load_dwordx4 v6, s[36:39], s51 offen nt lds")
            a("s_waitcnt vmcnt(0)")
            for t in range(4):
                d = GB + 16 * j + 4 * t
                o = (t >> 1) * 2048 + (t & 1) * 32
                a(f"ds_read_b64_tr_b16 v[{d}:{d+1}], v7 offset:{o}")
                a(f"ds_read_b64_tr_b16 v[{d+2}:{d+3}], v7 offset:{o+256}")
            a("s_waitcnt lgkmcnt(0)")
            a(f"{L}:")
        self.srd(32, (20, 21), 4608 * 1152)
        self.addr128()
        for k in range(3):
            L = a.label("L_ffn_dk")
            if k == 2: a(f"s_cmp_lg_u32 s47, 0\ns_cbranch_scc1 {L}")
            a(f"s_mul_i32 s50, s48, {32*1152}\ns_lshl_b32 s55, s47, 7\ns_add_u32 s50, s50, s55\ns_add_u32 s54, s50, {k*4*128}")
            self.chunk128("s54", DB + k * 16)
            a(f"{L}:")
        a(f"""
        s_and_b32 s50, s47, 1
        s_lshl_b32 s50, s50, 6               ; b*64
        v_add_u32 v8, 128, v1
        v_min_u32 v8, 143, v8
        v_lshrrev_b32 v9, 2, v8
        v_lshlrev_b32 v9, 7, v9
        v_and_b32 v10, 3, v8
        v_lshl_add_u32 v9, v10, 4, v9
        v_add_u32 v25, s50, v9
        v_lshrrev_b32 v9, 2, v1
        v_lshlrev_b32 v9, 7, v9
        v_and_b32 v10, 3, v1
        v_lshl_add_u32 v9, v10, 4, v9
        v_add_u32 v24, s50, v9
        v_add_u32 v26, {W_MOD + 108*128}, v24
        v_add_u32 v27, {W_MOD + 108*128}, v25
        v_add_u32 v28, {W_MOD + 144*128}, v24
        v_add_u32 v29, {W_MOD + 144*128}, v25
        """)
        L = a.label("L_ffn_pp")
        a(f"""
        {L}:
        global_load_dwordx4 v[32:35], v26, {S_WS} sc1
        global_load_dwordx4 v[36:39], v26, {S_WS} offset:2048 sc1
        global_load_dwordx4 v[40:43], v27, {S_WS} sc1
        global_load_dwordx4 v[44:47], v28, {S_WS} sc1
        global_load_dwordx4 v[48:51], v28, {S_WS} offset:2048 sc1
        global_load_dwordx4 v[52:55], v29, {S_WS} sc1
        s_waitcnt vmcnt(0)
        s_mov_b64 s[52:53], 0
        """)
        for r in range(33, 56, 2):
            a(f"v_cmp_ne_u32 vcc, v{r}, v58\ns_or_b64 s[52:53], s[52:53], vcc")
        self.poll_guard(L, 8)
        for rho in range(3):
            a(f"v_mov_b32 v{224+2*rho}, v{32+4*rho}\nv_mov_b32 v{225+2*rho}, v{34+4*rho}")
            for h in range(2):
                self.unpk("v8", "v9", f"v{44+4*rho+2*h}")
                a("v_add_f32 v8, 1.0, v8\nv_add_f32 v9, 1.0, v9")
                a(f"v_cvt_pk_bf16_f32 v{230+2*rho+h}, v8, v9")
        a(f"""
        s_and_b32 s50, s47, 1
        s_mul_i32 s51, s50, 2304
        s_add_u32 s51, s51, {W_X1}
        v_lshlrev_b32 v8, 4, v1
        v_add_u32 v20, s51, v8
        v_add_u32 v8, 128, v1
        v_min_u32 v9, 143, v8
        v_lshlrev_b32 v10, 4, v9
        v_add_u32 v21, s51, v10              ; rho 2
        s_mul_i32 s51, s50, 1152
        s_add_u32 s51, s51, {L_XV0}
        v_lshlrev_b32 v10, 3, v1
        v_add_u32 v22, s51, v10
        v_lshlrev_b32 v10, 3, v9
        v_add_u32 v23, s51, v10
        v_cmp_gt_u32 vcc, 144, v8
        v_cndmask_b32 v19, 0, 1.0, vcc
        """)
        a(f"""
        v_add_u32 v18, {L_XV0}, v5
        s_mul_i32 s50, s48, 4608
        s_add_u32 s50, s50, {W_Z}
        s_lshl_b32 s51, s47, 8
        s_add_u32 s62, s50, s51
        """)
        self.out_addr("v17", "s62")
        a(f"s_mov_b32 s54, {NLOG2E:#x}")
        self.wait_init()
        a("s_barrier")
        self.stamp(7)
        a("s_cmp_lt_u32 s47, 2\ns_cbranch_scc0 L_ffn_nx")
        L = a.label("L_hopC")
        a(f"""
        {L}:
        global_load_dwordx4 v[32:35], v20, {S_WS} sc1
        global_load_dwordx4 v[36:39], v20, {S_WS} offset:1024 sc1
        global_load_dwordx4 v[40:43], v21, {S_WS} sc1
        s_waitcnt vmcnt(0)
        s_mov_b64 s[52:53], 0
        """)
        for r in range(32, 44):
            a(f"v_cmp_eq_u32 vcc, -1, v{r}\ns_or_b64 s[52:53], s[52:53], vcc")
        self.poll_guard(L, 9)
        a("v_add_f32 v8, v40, v41\nv_add_f32 v9, v42, v43\nv_add_f32 v8, v8, v9\nv_mul_f32 v8, v8, v19")
        for r in range(32, 40): a(f"v_add_f32 v8, v8, v{r}")
        self.red_all("v8", "v9", "v_add_f32")
        a(f"v_mul_f32 v8, {INV576:#x}, v8")
        a("v_sub_f32 v10, v40, v8\nv_mul_f32 v11, v10, v10")
        for r in range(41, 44): a(f"v_sub_f32 v10, v{r}, v8\nv_fmac_f32 v11, v10, v10")
        a("v_mul_f32 v11, v11, v19")
        for r in range(32, 40): a(f"v_sub_f32 v10, v{r}, v8\nv_fmac_f32 v11, v10, v10")
        self.red_all("v11", "v9", "v_add_f32")
        a(f"v_mul_f32 v11, {INV576:#x}, v11")
        self.ln_denom("v8", "v11", "v9")
        for rho in range(3):
            for h in range(2):
                x0, x1 = f"v{32+4*rho+2*h}", f"v{33+4*rho+2*h}"
                self.ln_norm(x0, x1, "v8", "v11", "v9")
                self.unpk("v12", "v13", f"v{230+2*rho+h}")
                a(f"v_mul_f32 {x0}, {x0}, v12\nv_mul_f32 {x1}, {x1}, v13")
                self.rbf2(x0, x1, "v9")
                self.unpk("v12", "v13", f"v{224+2*rho+h}")
                a(f"v_add_f32 {x0}, {x0}, v12\nv_add_f32 {x1}, {x1}, v13")
                a(f"v_cvt_pk_bf16_f32 v{44+2*rho+h}, {x0}, {x1}")
        a("""
        ds_write_b64 v22, v[44:45]
        ds_write_b64 v22, v[46:47] offset:512
        ds_write_b64 v23, v[48:49]
        s_waitcnt lgkmcnt(0)
        L_ffn_nx:
        s_barrier
        """)
        self.stamp(8)
        for j in range(5):
            a(f"ds_read_b128 v[{32+4*j}:{35+4*j}], v18 offset:{j*256}")
        a("s_waitcnt lgkmcnt(0)")
        L = a.label("L_ffn_m5")
        for j in range(5):
            if j == 4: a(f"s_cmp_ge_u32 s47, 2\ns_cbranch_scc1 {L}")
            for t in range(4):
                acc = 64 + 4 * t; b = GB + 16 * j + 4 * t
                c = "0" if j == 0 else f"v[{acc}:{acc+3}]"
                a(f"v_mfma_f32_16x16x32_bf16 v[{acc}:{acc+3}], v[{32+4*j}:{35+4*j}], v[{b}:{b+3}], {c}")
        a(f"{L}:")
        a("s_nop 7")
        a(f"""
        v_and_b32 v8, 31, v1
        v_lshlrev_b32 v8, 2, v8
        s_lshl_b32 s50, s47, 9
        s_add_u32 s50, s50, {L_RED2}
        v_add_u32 v8, s50, v8
        ds_write_b32 v8, v64
        ds_write_b32 v8, v68 offset:128
        ds_write_b32 v8, v72 offset:256
        ds_write_b32 v8, v76 offset:384
        s_waitcnt lgkmcnt(0)
        s_barrier
        v_bfe_u32 v8, v1, 4, 1
        v_lshlrev_b32 v8, 7, v8
        v_lshrrev_b32 v9, 5, v1
        v_lshlrev_b32 v9, 4, v9
        v_and_b32 v10, 15, v1
        v_add_u32 v9, v9, v10
        v_lshl_add_u32 v8, v9, 2, v8
        v_add_u32 v8, {L_RED2}, v8
        """)
        for w in range(4):
            a(f"ds_read_b32 v{32+w}, v8 offset:{w*512}\nds_read_b32 v{36+w}, v8 offset:{w*512+256}")
        a("""
        s_waitcnt lgkmcnt(0)
        v_add_f32 v32, v32, v33
        v_add_f32 v34, v34, v35
        v_add_f32 v36, v36, v37
        v_add_f32 v38, v38, v39
        v_add_f32 v32, v32, v34
        v_add_f32 v36, v36, v38
        """)
        self.rbf2("v32", "v36", "v9")
        a("""
        v_mul_f32 v10, s54, v32
        v_exp_f32 v10, v10
        v_add_f32 v10, 1.0, v10
        v_rcp_f32 v10, v10
        v_mul_f32 v32, v32, v10
        """)
        self.rbf("v32", "v9")
        a(f"""
        v_mul_f32 v32, v32, v36
        v_cvt_pk_bf16_f32 v32, v32, v32
        s_lshl_b32 s50, s47, 7
        s_add_u32 s50, s50, {L_GU}
        v_lshlrev_b32 v8, 1, v1              ; b*64 + f*2
        v_add_u32 v8, s50, v8
        ds_write_b16 v8, v32
        v_bfe_u32 v8, v1, 2, 1
        v_lshlrev_b32 v8, 6, v8
        v_lshrrev_b32 v9, 4, v1
        v_lshl_add_u32 v8, v9, 4, v8
        v_add_u32 v8, s50, v8
        s_waitcnt lgkmcnt(0)
        ds_read_b128 v[24:27], v8
        s_waitcnt lgkmcnt(0)
        """)
        for k in range(3):
            L = a.label("L_ffn_mk")
            if k == 2: a(f"s_cmp_lg_u32 s47, 0\ns_cbranch_scc1 {L}")
            for t in range(4):
                acc = 32 + 4 * t; b = DB + 16 * k + 4 * t
                a(f"v_mfma_f32_16x16x32_bf16 v[{acc}:{acc+3}], v[24:27], v[{b}:{b+3}], 0")
            a("s_nop 7")
            self.pair_store("v32", "v36", "v17", k * 1024, "v48")
            self.pair_store("v40", "v44", "v17", k * 1024 + 128, "v49")
            a(f"{L}:")
        self.stamp(9)
        a("s_branch L_hdone")

    def red_phase(self, wbase, nblk_total, red, tag):
        a = self.a
        nj = (nblk_total + 3) // 4
        full = nblk_total // 4
        a(f"""
        s_lshl_b32 s50, s48, 7
        s_add_u32 s50, s50, {wbase}
        s_mul_i32 s51, s47, {8*4608}
        s_add_u32 s50, s50, s51
        v_lshrrev_b32 v8, 3, v1
        v_mul_u32_u24 v9, 4608, v8
        v_and_b32 v8, 7, v1
        v_lshl_add_u32 v9, v8, 4, v9
        v_add_u32 v20, s50, v9
        """)
        rem = nblk_total - 4 * full
        Lp = a.label(f"L_poll{tag}")
        a(f"{Lp}:")
        for j in range(nj):
            Ls = None
            if j >= full:
                Ls = a.label("L_rsk")
                a(f"v_mov_b32 v{32+4*j}, 0\nv_mov_b32 v{33+4*j}, 0\nv_mov_b32 v{34+4*j}, 0\nv_mov_b32 v{35+4*j}, 0")
                a(f"s_cmp_ge_u32 s47, {rem}\ns_cbranch_scc1 {Ls}")
            a(f"v_add_u32 v9, {j*32*4608}, v20\nglobal_load_dwordx4 v[{32+4*j}:{35+4*j}], v9, {S_WS} sc1")
            if Ls: a(f"{Ls}:")
        a("s_waitcnt vmcnt(0)\ns_mov_b64 s[52:53], 0")
        for r in range(32, 32 + 4 * nj):
            a(f"v_cmp_eq_u32 vcc, -1, v{r}\ns_or_b64 s[52:53], s[52:53], vcc")
        self.poll_guard(Lp, 10 if tag == "B" else 11)
        for i in range(4):
            for j in range(1, nj):
                a(f"v_add_f32 v{32+i}, v{32+i}, v{32+4*j+i}")
        for i in range(4):
            self.dppop("v_add_f32", f"v{32+i}", "row_ror:8")
        for i in range(4):
            self.red16_32(f"v{32+i}", "v9", "v_add_f32")
        a(f"""
        v_and_b32 v8, 7, v1
        v_lshlrev_b32 v8, 4, v8
        s_lshl_b32 s50, s47, 7
        s_add_u32 s50, s50, {red}
        v_add_u32 v8, s50, v8
        s_mov_b64 exec, 0xff
        ds_write_b128 v8, v[32:35]
        s_mov_b64 exec, -1
        s_waitcnt lgkmcnt(0)
        s_barrier
        v_and_b32 v9, 31, v1
        v_lshlrev_b32 v9, 2, v9
        v_add_u32 v9, {red}, v9
        ds_read_b32 v8, v9
        ds_read_b32 v10, v9 offset:128
        ds_read_b32 v11, v9 offset:256
        ds_read_b32 v12, v9 offset:384
        s_waitcnt lgkmcnt(0)
        v_add_f32 v8, v8, v10
        v_add_f32 v11, v11, v12
        v_add_f32 v8, v8, v11
        """)

    def role_red(self):
        a = self.a
        a("L_red:")
        a(f"""
        s_cmp_ge_u32 s48, 18
        s_cselect_b32 s60, 1, 0              ; b
        s_mul_i32 s50, s60, 18
        s_sub_u32 s61, s48, s50              ; m
        v_and_b32 v24, 31, v1
        s_lshl_b32 s50, s61, 5
        v_add_u32 v24, s50, v24              ; d
        s_mul_i32 s51, s60, 1152
        v_lshlrev_b32 v25, 1, v24
        v_add_u32 v25, s51, v25
        global_load_ushort v26, v25, {S_X}
        ; granule address: line t = type*36 + d/16 ; granule b*8 + (d%16)/2
        v_lshrrev_b32 v27, 4, v24
        v_lshlrev_b32 v27, 7, v27
        v_bfe_u32 v28, v24, 1, 3
        v_lshl_add_u32 v27, v28, 3, v27
        s_lshl_b32 s51, s60, 6
        v_add_u32 v27, s51, v27
        v_add_u32 v28, {W_MOD + 72*128}, v27
        v_add_u32 v29, {W_MOD + 180*128}, v27
        """)
        L = a.label("L_red_pp")
        a(f"""
        {L}:
        global_load_dwordx2 v[14:15], v28, {S_WS} sc1
        global_load_dwordx2 v[16:17], v29, {S_WS} sc1
        s_waitcnt vmcnt(0)
        v_cmp_ne_u32 vcc, v15, v58
        s_mov_b64 s[52:53], vcc
        v_cmp_ne_u32 vcc, v17, v58
        s_or_b64 s[52:53], s[52:53], vcc
        """)
        self.poll_guard(L, 12)
        a("""
        v_and_b32 v8, 1, v24
        v_cmp_eq_u32 vcc, 1, v8
        v_lshlrev_b32 v9, 16, v14
        v_and_b32 v10, 0xffff0000, v14
        v_cndmask_b32 v21, v9, v10, vcc
        v_lshlrev_b32 v9, 16, v16
        v_and_b32 v10, 0xffff0000, v16
        v_cndmask_b32 v22, v9, v10, vcc
        v_lshlrev_b32 v23, 16, v26
        """)
        self.wait_init()
        a("s_barrier")
        self.stamp(7)
        self.red_phase(W_Y, 8, L_RED, "B")
        self.rbf("v8", "v9")
        a("v_mul_f32 v8, v21, v8")
        self.rbf("v8", "v9")
        a("v_add_f32 v8, v23, v8")
        self.rbf("v8", "v9")
        a(f"""
        v_mov_b32 v19, v8                    ; x1
        s_cmp_eq_u32 s47, 0
        s_cbranch_scc0 L_red_n1
        s_lshl_b32 s50, s48, 7
        s_add_u32 s50, s50, {W_X1}
        v_lshlrev_b32 v9, 2, v1
        v_add_u32 v9, s50, v9
        s_mov_b32 s50, -1
        s_mov_b32 s51, 0
        s_mov_b64 exec, s[50:51]
        global_store_dword v9, v19, {S_WS} sc0 sc1
        s_mov_b64 exec, -1
        L_red_n1:
        """)
        self.stamp(8)
        self.red_phase(W_Z, 18, L_REDB, "D")
        self.rbf("v8", "v9")
        a("v_mul_f32 v8, v22, v8")
        self.rbf("v8", "v9")
        a("v_add_f32 v8, v19, v8")
        a(f"""
        s_cmp_eq_u32 s47, 0
        s_cbranch_scc0 L_red_n2
        v_mov_b32_dpp v9, v8 quad_perm:[1,0,3,2] row_mask:0xf bank_mask:0xf
        v_cvt_pk_bf16_f32 v10, v8, v9
        s_mul_i32 s50, s60, 1152
        s_lshl_b32 s51, s61, 6
        s_add_u32 s50, s50, s51
        v_lshlrev_b32 v9, 1, v1
        v_add_u32 v9, s50, v9
        s_mov_b32 s50, 0x55555555
        s_mov_b32 s51, 0
        s_mov_b64 exec, s[50:51]
        global_store_dword v9, v10, {S_OUT}
        s_cmp_eq_u32 s48, 0
        s_cbranch_scc0 L_red_n3
        s_mov_b64 exec, 1
        v_mov_b32 v9, 0
        global_store_dword v9, v58, {S_WS} sc0 sc1
        L_red_n3:
        s_mov_b64 exec, -1
        L_red_n2:
        """)
        self.stamp(9)


if __name__ == "__main__":
    out = sys.argv[1] if len(sys.argv) > 1 else "main.s"
    stamps = "--stamps" in sys.argv
    opts = {}
    for x in sys.argv[2:]:
        if "=" in x:
            k, v = x.split("=")
            opts[k] = v if not v.lstrip("-").isdigit() else int(v)
    for k in ("dyn", "codepf"):
        if k in opts: opts[k] = bool(opts[k])
    g = Gen(stamps=stamps, opts=opts)
    txt = g.build()
    open(out, "w").write(txt)
    print("written", out, len(txt.splitlines()), "lines")
```

```python
import sys
from asmlib import *

NWG = 256
D_RING = 4
RINGW = D_RING * 8192
NITEMS = 1024
L_RING = 0
L_STG = 4 * RINGW
STGW = 5120
L_XV0 = L_STG + 4 * STGW
L_XV1 = L_XV0 + 2304
L_QB = L_XV1 + 2304
L_MRG = L_QB + 512
MRGW = 1056
L_RED = L_MRG + 4 * MRGW
L_REDB = L_RED + 512
L_FLAG = L_REDB + 512
L_OB = L_FLAG + 64
L_GU = L_OB + 256
L_END = L_GU + 512
L_RED2 = L_XV1
LDS_BYTES = 163840
assert L_END <= LDS_BYTES
F_HS = L_FLAG
F_Q = L_FLAG + 4
F_SC = L_FLAG + 8
F_H = L_FLAG + 12
F_RED = L_FLAG + 16
F_PUB = L_FLAG + 20
W_EPOCH = 0
W_MOD = 0x1000
W_Q = 0x8000
W_PART = 0x20000
PARTW = 1152
W_Y = 0x70000
W_X1 = 0xC0000
W_Z = 0xD0000
W_CNT = 0x180000
W_STAMP = 0x200000
SPIN_LIMIT = 400000
LOG2E = 0x3fb8aa3b
NLOG2E = 0xbfb8aa3b
SCALE = 0x3db504f3
EPS = 0x3727c5ac
INV576 = 0x3ae38e39

S_X, S_K, S_V, S_WQ, S_WO = "s[4:5]", (6, 7), (8, 9), (10, 11), (12, 13)
S_WS = "s[30:31]"; S_DBG = "s[28:29]"; S_OUT = "s[26:27]"; S_C = "s[22:23]"


class Gen:
    def __init__(self, stamps=False, opts=None):
        self.a = Asm()
        self.stamps = stamps
        self.o = dict(delta=2, dyn=True, pw=8, pol="nt", codepf=True)
        self.o.update(opts or {})
        self.nst = 0

    def pstamp(self, k):
        if self.stamps and self.o.get("probe") == "start":
            self.a(f"s_memrealtime s[{80+2*k}:{81+2*k}]")

    def stamp(self, k):
        if self.o.get("probe") in ("start", "hop1") and k in (7, 8, 9) and getattr(self, "in_role", False): return
        if self.stamps:
            self.a(f"s_memrealtime s[{80+2*k}:{81+2*k}]")

    def stamp_flush(self):
        if not self.stamps: return
        a = self.a
        a("s_waitcnt vmcnt(0) lgkmcnt(0)")
        a("s_mov_b64 exec, 1")
        a(f"s_lshl_b32 s44, s2, 3\ns_add_u32 s44, s44, s3\ns_lshl_b32 s44, s44, 7\ns_add_u32 s44, s44, {W_STAMP}")
        a("v_mov_b32 v2, s44")
        for k in range(10):
            a(f"v_mov_b32 v4, s{80+2*k}\nv_mov_b32 v5, s{81+2*k}\nglobal_store_dwordx2 v2, v[4:5], {S_WS} offset:{8*k}\ns_nop 1")
        a(f"v_mov_b32 v4, s76\nv_mov_b32 v5, s77\nglobal_store_dwordx2 v2, v[4:5], {S_WS} offset:80\ns_nop 1")
        a(f"v_mov_b32 v4, s78\nv_mov_b32 v5, s79\nglobal_store_dwordx2 v2, v[4:5], {S_WS} offset:88\ns_nop 1")
        a("s_waitcnt vmcnt(0)")

    def mark(self, r):
        if self.stamps: self.a(f"s_mov_b32 s{r}, s73")

    def srd(self, r, base, nrec):
        self.a(f"s_mov_b32 s{r}, s{base[0]}\ns_and_b32 s{r+1}, s{base[1]}, 0xffff\ns_mov_b32 s{r+2}, {nrec}\ns_mov_b32 s{r+3}, 0x20000")

    def red16_32(self, v, t, op):
        self.a(f"v_mov_b32 {t}, {v}\nv_permlane16_swap_b32 {t}, {v}\n{op} {v}, {v}, {t}")
        self.a(f"v_mov_b32 {t}, {v}\nv_permlane32_swap_b32 {t}, {v}\n{op} {v}, {v}, {t}")

    def red32(self, v, t, op):
        self.a(f"v_mov_b32 {t}, {v}\nv_permlane32_swap_b32 {t}, {v}\n{op} {v}, {v}, {t}")

    def dppop(self, op, v, ctrl):
        self.a(f"{op}_dpp {v}, {v}, {v} {ctrl} row_mask:0xf bank_mask:0xf")

    def rbf(self, v, t):
        self.a(f"v_cvt_pk_bf16_f32 {t}, {v}, {v}\nv_lshlrev_b32 {v}, 16, {t}")

    def rbf2(self, x, y, t):
        self.a(f"v_cvt_pk_bf16_f32 {t}, {x}, {y}\nv_lshlrev_b32 {x}, 16, {t}\nv_and_b32 {y}, 0xffff0000, {t}")

    def unpk(self, lo, hi, src):
        self.a(f"v_lshlrev_b32 {lo}, 16, {src}\nv_and_b32 {hi}, 0xffff0000, {src}")

    def guard(self, code):
        self.a(f"s_add_u32 s73, s73, 1\ns_cmp_gt_u32 s73, {SPIN_LIMIT}\ns_movk_i32 s74, {code}\ns_cbranch_scc1 L_fail")

    def hsync(self):
        a = self.a
        L = a.label("L_hs")
        a("s_waitcnt lgkmcnt(0)")
        a("s_mov_b64 exec, 1")
        a("ds_add_u32 v60, v61")
        a("s_mov_b64 exec, -1")
        a("s_add_u32 s70, s70, 4")
        a(f"{L}:")
        self.guard(1)
        a("ds_read_b32 v62, v60")
        a("s_waitcnt lgkmcnt(0)")
        a("v_readfirstlane_b32 s71, v62")
        a("s_cmp_ge_u32 s71, s70")
        a(f"s_cbranch_scc0 {L}")

    def build(self):
        a = self.a
        a(HEADER)
        a(f"; @launch grid=({NWG},1,1) block=(512,1,1) lds={LDS_BYTES}")
        a('.amdgcn_target "amdgcn-amd-amdhsa--gfx950"\n.text')
        a(kernel_prologue(KNAME))
        a(f"""
        s_cmp_ge_u32 s2, {NWG}
        s_cbranch_scc1 L_exit
        s_load_dwordx16 s[4:19], s[0:1], 0
        s_load_dwordx8 s[20:27], s[0:1], 64
        s_load_dwordx4 s[28:31], s[0:1], 96
        """)
        self.stamp(0)
        a("""
        v_lshrrev_b32 v1, 6, v0
        v_readfirstlane_b32 s3, v1
        v_and_b32 v1, 63, v0
        s_mov_b32 s73, 0
        s_lshr_b32 s62, s2, 3
        s_add_u32 s63, s2, s62
        s_and_b32 s63, s63, 7                ; cls
        s_lshl_b32 s64, s62, 1
        s_mov_b32 s65, 0
        s_mov_b32 s66, 0
        s_cmp_ge_u32 s63, 6
        s_cbranch_scc0 L_c1
        s_mov_b32 s65, 2
        s_add_u32 s66, s64, s63
        s_sub_u32 s66, s66, 6
        s_branch L_c2
        L_c1:
        s_cmp_ge_u32 s63, 4
        s_cbranch_scc0 L_c2
        s_cmp_lt_u32 s62, 27
        s_cbranch_scc0 L_c2
        s_mov_b32 s65, 1
        s_add_u32 s66, s64, s63
        s_sub_u32 s66, s66, 4
        L_c2:
        s_cmp_lt_u32 s3, 4
        s_cbranch_scc1 L_streamer
        """)
        self.helper()
        a("L_streamer:")
        self.streamer()
        a(f"""
        L_fail:
        s_waitcnt vmcnt(0) lgkmcnt(0)
        s_mov_b64 exec, 1
        s_lshl_b32 s75, s2, 8
        s_or_b32 s74, s74, s75
        s_lshl_b32 s75, s3, 4
        s_or_b32 s74, s74, s75
        v_mov_b32 v2, 32
        v_mov_b32 v3, s74
        global_store_dword v2, v3, {S_DBG} sc0 sc1
        s_waitcnt vmcnt(0)
        L_exit:
        s_endpgm""")
        lines, probs = fix_hazards(a.lines, True)
        a.lines = lines
        a(kernel_desc(KNAME, 256))
        return a.text()

    def streamer(self):
        a = self.a
        if self.o["codepf"]:
            a(f"""
            s_cmp_eq_u32 s3, 3
            s_cbranch_scc0 L_nopf
            s_getpc_b64 s[40:41]
            L_pc:
            s_sub_u32 s40, s40, L_pc-{KNAME}
            s_subb_u32 s41, s41, 0
            v_lshlrev_b32 v20, 7, v1
            """)
            for kk in range(4):
                a(f"v_min_u32 v21, L_exit-{KNAME}, v20\nglobal_load_dword v200, v21, s[40:41]\nv_add_u32 v20, 8192, v20")
            a("L_nopf:")
        a("""
        v_lshrrev_b32 v20, 4, v1            ; gq / G
        v_and_b32 v21, 15, v1               ; p / r / i
        v_xor_b32 v22, v21, v20
        v_lshlrev_b32 v22, 4, v22           ; (p^g)*16
        v_lshlrev_b32 v23, 8, v20           ; g*256
        """)
        for j in range(4):
            a(f"v_xor_b32 v24, {64*j}, v22\nv_add_u32 v{2+j}, v23, v24")
        for j in range(2):
            a(f"v_or_b32 v24, {4*j}, v20\nv_lshlrev_b32 v24, 1, v24\nv_xor_b32 v24, v21, v24\nv_lshlrev_b32 v24, 4, v24\nv_add_u32 v{6+j}, v23, v24")
        a(f"s_mul_i32 s45, s3, {RINGW}")
        a("v_lshlrev_b32 v25, 8, v21\nv_add_u32 v25, s45, v25     ; ring + r*256")
        for j in range(4):
            a(f"v_xor_b32 v24, {64*j}, v22\nv_add_u32 v{8+j}, v25, v24")
        a("""
        v_lshrrev_b32 v26, 2, v21
        v_lshl_add_u32 v26, v20, 2, v26     ; key
        v_and_b32 v27, 7, v26               ; kappa
        v_lshlrev_b32 v27, 5, v27           ; kappa*32
        v_lshlrev_b32 v26, 8, v26           ; key*256
        v_and_b32 v28, 3, v21
        v_lshl_add_u32 v26, v28, 3, v26
        v_add_u32 v26, s45, v26
        v_add_u32 v26, 4096, v26
        """)
        for u in range(8):
            a(f"v_xor_b32 v24, {32*u}, v27\nv_add_u32 v{12+u}, v26, v24")
        R = D_RING; DL = self.o["delta"]; DYN = self.o["dyn"]; NA = 1 if DYN else 0; POL = self.o["pol"]
        POLK = self.o.get("polk", POL).replace("def", ""); POLV = self.o.get("polv", POL).replace("def", "")
        assert DL in (1, 2, 4)
        a(f"""
        s_lshr_b32 s46, s2, 3               ; group
        s_and_b32 s47, s2, 7                ; member
        s_lshl_b32 s47, s47, 2
        s_add_u32 s44, s47, s3              ; worker 0..31
        s_lshl_b32 s48, s46, 8
        s_add_u32 s48, s48, {W_CNT}
        v_mov_b32 v119, s48
        s_waitcnt lgkmcnt(0)
        s_lshl_b32 s48, s46, 22
        s_add_u32 s32, s6, s48
        s_addc_u32 s33, s7, 0
        s_and_b32 s33, s33, 0xffff
        s_mov_b32 s34, 0x400000
        s_mov_b32 s35, 0x20000
        s_add_u32 s36, s8, s48
        s_addc_u32 s37, s9, 0
        s_and_b32 s37, s37, 0xffff
        s_mov_b32 s38, 0x400000
        s_mov_b32 s39, 0x20000
        """)
        self.pstamp(8)
        a("s_barrier")
        self.stamp(1)
        gate = self.o.get("gate", "")
        Lg = a.label("L_gate"); Lgd = a.label("L_gated")
        a(f"s_mov_b32 s58, {F_PUB}\ns_mov_b32 s59, 4\ns_cmp_eq_u32 s65, 2\ns_cselect_b32 s58, {F_Q}, s58\ns_cselect_b32 s59, 1, s59")
        if gate == "q":
            a(f"s_mov_b32 s58, {F_Q}\ns_mov_b32 s59, 1")
        else:
            a(f"s_cmp_eq_u32 s65, 0\ns_cbranch_scc1 {Lgd}")
        a(f"v_mov_b32 v115, s58\n{Lg}:")
        self.guard(15)
        a(f"s_sleep 1\nds_read_b32 v114, v115\ns_waitcnt lgkmcnt(0)\nv_readfirstlane_b32 s53, v114\ns_cmp_ge_u32 s53, s59\ns_cbranch_scc0 {Lg}\n{Lgd}:")

        def issue_half(slot, half, soff):
            if half == 0:
                a(f"s_add_u32 m0, s45, {slot*8192}")
                for j in range(4):
                    a(f"buffer_load_dwordx4 v{2+j}, s[32:35], {soff} offen offset:{j*1024} {POLK} lds")
            else:
                a(f"s_add_u32 m0, s45, {slot*8192+4096}")
                for j in range(4):
                    a(f"buffer_load_dwordx4 v{6+(j&1)}, s[36:39], {soff} offen offset:{j*1024} {POLV} lds")
        def issue(slot, soff):
            issue_half(slot, 0, soff); issue_half(slot, 1, soff)
        PW = self.o["pw"]
        for sl in range(R):
            a(f"s_add_u32 s49, s44, {sl*32}\ns_lshl_b32 s49, s49, 12")
            for h in range(2):
                n_before = sl * 8 + h * 4
                if n_before + 4 > PW and PW < 32:
                    Lw = a.label("L_pw")
                    a(f"s_cmp_eq_u32 s65, 0\ns_cbranch_scc0 {Lw}\ns_waitcnt vmcnt({PW-4})\n{Lw}:")
                if sl == 1 and h == 1: self.stamp(5)
                issue_half(sl, h, "s49")
        self.stamp(6)
        if self.stamps:
            a("s_waitcnt vmcnt(0)")
            self.stamp(7)
        a(f"""
        s_mov_b32 s50, {SCALE:#x}
        s_mov_b32 s51, {LOG2E:#x}
        s_mov_b32 s52, {NLOG2E:#x}
        v_mov_b32 v112, 0xff800000
        v_mov_b32 v113, 0
        """)
        for r in range(80, 112): a(f"v_mov_b32 v{r}, 0")
        for e in range(DL):
            a(f"s_add_u32 s53, s44, {(R+DL+e)*32}\nv_mov_b32 v{120+e}, s53")
        Lq = a.label("L_wq")
        a(f"""
        v_mov_b32 v115, {F_Q}
        {Lq}:
        """)
        self.guard(4)
        a(f"""
        s_sleep 1
        ds_read_b32 v114, v115
        s_waitcnt lgkmcnt(0)
        v_readfirstlane_b32 s53, v114
        s_cmp_eq_u32 s53, 1
        s_cbranch_scc0 {Lq}
        """)
        self.stamp(2)
        a(f"""
        v_and_b32 v114, 1, v1
        v_lshlrev_b32 v114, 8, v114
        v_lshrrev_b32 v115, 4, v1
        v_lshl_add_u32 v114, v115, 4, v114
        v_add_u32 v114, {L_QB}, v114
        """)
        for j in range(4):
            a(f"ds_read_b128 v[{20+4*j}:{23+4*j}], v114 offset:{64*j}")
        a("s_waitcnt lgkmcnt(0)")
        a("s_mov_b32 s54, 0          ; round\ns_mov_b32 s56, 0          ; draining\ns_mov_b32 s57, 0")
        a("L_sloop:")
        per = 8 + NA
        for sl in range(R):
            Lgo = a.label("L_go"); Lw0 = a.label("L_w0"); Lw1 = a.label("L_w1"); Lw2 = a.label("L_w2")
            first = (R - 1 - sl) * 8 + min(sl, DL) * 8
            steady = (DL - 1) * per
            a(f"s_cmp_lg_u32 s56, 0\ns_cbranch_scc1 {Lw0}\ns_cmp_eq_u32 s54, 0\ns_cbranch_scc1 {Lw1}")
            second = None
            if sl < DL - 1:
                second = (DL - 1 - sl) * 8 + sl * per
                a(f"s_cmp_eq_u32 s54, 1\ns_cbranch_scc1 {Lw2}")
            a(f"s_waitcnt vmcnt({steady})\ns_branch {Lgo}")
            if second is not None: a(f"{Lw2}:\ns_waitcnt vmcnt({second})\ns_branch {Lgo}")
            a(f"{Lw1}:\ns_waitcnt vmcnt({first})\ns_branch {Lgo}")
            a(f"{Lw0}:\ns_waitcnt vmcnt(0)\n{Lgo}:")
            off = sl * 8192
            for j in range(4):
                a(f"ds_read_b128 v[{36+4*j}:{39+4*j}], v{8+j} offset:{off}")
            for u in range(8):
                a(f"ds_read_b64_tr_b16 v[{52+2*u}:{53+2*u}], v{12+u} offset:{off}")
            a("s_waitcnt lgkmcnt(8)")
            for j in range(4):
                c = "0" if j == 0 else "v[68:71]"
                a(f"v_mfma_f32_16x16x32_bf16 v[68:71], v[{36+4*j}:{39+4*j}], v[{20+4*j}:{23+4*j}], {c}")
            a("s_waitcnt lgkmcnt(0)")
            Ln = a.label("L_ni"); Lf = a.label("L_fi"); Ld = a.label("L_dr")
            e = sl % DL
            a(f"s_cmp_lg_u32 s56, 0\ns_cbranch_scc1 {Ln}\ns_cmp_eq_u32 s54, 0\ns_cbranch_scc1 {Lf}")
            a(f"v_readfirstlane_b32 s53, v{120+e}\ns_cmp_ge_u32 s53, {NITEMS}\ns_cbranch_scc1 {Ld}")
            if DYN:
                a(f"v_mov_b32 v{120+e}, 1\ns_mov_b64 exec, 1\nglobal_atomic_add v{120+e}, v119, v{120+e}, {S_WS} sc0 sc1\ns_mov_b64 exec, -1")
            else:
                a(f"v_add_u32 v{120+e}, {DL*32}, v{120+e}")
            tgt = (sl + DL) % R
            a("s_lshl_b32 s49, s53, 12")
            issue(tgt, "s49")
            a(f"s_branch {Ln}")
            a(f"{Ld}:\ns_mov_b32 s56, 1\ns_mov_b32 s57, {DL}\ns_branch {Ln}")
            a(f"{Lf}:")
            if sl < DL:
                a(f"s_add_u32 s49, s44, {(R+sl)*32}\ns_lshl_b32 s49, s49, 12")
                issue(sl, "s49")
            a(f"{Ln}:")
            a("s_nop 5")
            a("""
            v_cvt_pk_bf16_f32 v76, v68, v69
            v_cvt_pk_bf16_f32 v77, v70, v71
            v_lshlrev_b32 v72, 16, v76
            v_and_b32 v73, 0xffff0000, v76
            v_lshlrev_b32 v74, 16, v77
            v_and_b32 v75, 0xffff0000, v77
            v_mul_f32 v72, s50, v72
            v_mul_f32 v73, s50, v73
            v_mul_f32 v74, s50, v74
            v_mul_f32 v75, s50, v75
            v_cvt_pk_bf16_f32 v76, v72, v73
            v_cvt_pk_bf16_f32 v77, v74, v75
            v_lshlrev_b32 v72, 16, v76
            v_and_b32 v73, 0xffff0000, v76
            v_lshlrev_b32 v74, 16, v77
            v_and_b32 v75, 0xffff0000, v77
            v_max3_f32 v114, v72, v73, v74
            v_max_f32 v114, v114, v75
            """)
            self.red16_32("v114", "v115", "v_max_f32")
            Ls = a.label("L_nr")
            a(f"""
            v_max_f32 v114, v114, v112
            v_cmp_gt_f32 vcc, v114, v112
            s_cbranch_vccz {Ls}
            v_sub_f32 v116, v112, v114
            v_mul_f32 v116, s51, v116
            v_exp_f32 v116, v116
            v_mov_b32 v112, v114
            v_mul_f32 v113, v113, v116
            """)
            for r in range(80, 112, 2):
                a(f"v_pk_mul_f32 v[{r}:{r+1}], v[{r}:{r+1}], v[116:117] op_sel_hi:[1,0]")
            a(f"{Ls}:")
            a("""
            v_mul_f32 v118, s52, v112
            v_fma_f32 v72, v72, s51, v118
            v_fma_f32 v73, v73, s51, v118
            v_fma_f32 v74, v74, s51, v118
            v_fma_f32 v75, v75, s51, v118
            v_exp_f32 v72, v72
            v_exp_f32 v73, v73
            v_exp_f32 v74, v74
            v_exp_f32 v75, v75
            v_cvt_pk_bf16_f32 v78, v72, v73
            v_cvt_pk_bf16_f32 v79, v74, v75
            v_add_f32 v72, v72, v73
            v_add_f32 v74, v74, v75
            v_add_f32 v72, v72, v74
            v_add_f32 v113, v113, v72
            """)
            for u in range(8):
                a(f"v_mfma_f32_16x16x16_bf16 v[{80+4*u}:{83+4*u}], v[{52+2*u}:{53+2*u}], v[78:79], v[{80+4*u}:{83+4*u}]")
            Lc = a.label("L_ct")
            a(f"s_cmp_eq_u32 s56, 0\ns_cbranch_scc1 {Lc}\ns_sub_u32 s57, s57, 1\ns_cmp_eq_u32 s57, 0\ns_cbranch_scc1 L_sdrained\n{Lc}:")
        a(f"s_add_u32 s54, s54, 1\ns_branch L_sloop")
        a("L_sdrained:")
        self.stamp(3)
        self.red16_32("v113", "v115", "v_add_f32")
        a(f"""
        s_mul_i32 s53, s3, {MRGW}
        s_add_u32 s53, s53, {L_MRG}
        v_and_b32 v114, 1, v1
        v_lshlrev_b32 v115, 9, v114          ; head*512
        v_lshrrev_b32 v116, 4, v1
        v_lshl_add_u32 v115, v116, 4, v115   ; + G*16
        v_add_u32 v115, s53, v115
        v_lshlrev_b32 v114, 3, v114
        v_add_u32 v114, s53, v114            ; head*8
        v_mov_b32 v116, v112
        v_mov_b32 v117, v113
        s_mov_b32 s56, 0x00030003
        s_mov_b32 s57, 0x00030003
        s_mov_b64 exec, s[56:57]
        """)
        for u in range(8):
            a(f"ds_write_b128 v115, v[{80+4*u}:{83+4*u}] offset:{64*u}")
        a(f"""
        s_mov_b64 exec, 3
        ds_write_b64 v114, v[116:117] offset:1024
        s_mov_b64 exec, -1
        s_waitcnt lgkmcnt(0)
        """)
        self.stamp(8)
        a("s_barrier")
        self.stamp(9)
        a("""
        s_cmp_lg_u32 s3, 0
        s_cbranch_scc1 L_sdone
        """)
        a(f"""
        v_lshrrev_b32 v2, 5, v1              ; head
        v_and_b32 v3, 31, v1                 ; dq
        v_lshlrev_b32 v4, 9, v2
        v_lshl_add_u32 v4, v3, 4, v4
        v_add_u32 v4, {L_MRG}, v4
        v_lshlrev_b32 v5, 3, v2
        v_add_u32 v5, {L_MRG+1024}, v5
        """)
        for w in range(4):
            a(f"ds_read_b64 v[{8+2*w}:{9+2*w}], v5 offset:{w*MRGW}")
        for w in range(4):
            a(f"ds_read_b128 v[{16+4*w}:{19+4*w}], v4 offset:{w*MRGW}")
        a("""
        s_waitcnt lgkmcnt(4)
        v_max3_f32 v6, v8, v10, v12
        v_max_f32 v6, v6, v14               ; M
        """)
        for w in range(4):
            a(f"v_sub_f32 v{8+2*w}, v{8+2*w}, v6\nv_mul_f32 v{8+2*w}, s51, v{8+2*w}")
        for w in range(4):
            a(f"v_exp_f32 v{8+2*w}, v{8+2*w}")
        a("""
        v_mul_f32 v7, v8, v9
        v_fmac_f32 v7, v10, v11
        v_fmac_f32 v7, v12, v13
        v_fmac_f32 v7, v14, v15             ; L
        s_waitcnt lgkmcnt(0)
        """)
        for i in range(4):
            a(f"v_mul_f32 v{32+i}, v8, v{16+i}")
            for w in range(1, 4):
                a(f"v_fmac_f32 v{32+i}, v{8+2*w}, v{16+4*w+i}")
        for i in range(4):
            a(f"v_min_u32 v{32+i}, -2, v{32+i}")
        a(f"""
        v_min_u32 v6, -2, v6
        v_min_u32 v7, -2, v7
        s_mul_i32 s53, s2, {PARTW}
        s_add_u32 s53, s53, {W_PART}
        v_lshlrev_b32 v2, 4, v1
        v_add_u32 v2, s53, v2
        global_store_dwordx4 v2, v[32:35], {S_WS} sc0 sc1
        v_lshrrev_b32 v3, 5, v1
        v_lshlrev_b32 v3, 3, v3
        v_add_u32 v3, s53, v3
        s_mov_b32 s56, 1
        s_mov_b32 s57, 1
        s_mov_b64 exec, s[56:57]
        global_store_dwordx2 v3, v[6:7], {S_WS} offset:1024 sc0 sc1
        s_mov_b64 exec, -1
        """)
        self.stamp(4)
        a("L_sdone:")
        self.stamp_flush()
        a("s_endpgm")

    def t64_issue(self, base, stride, nrec):
        a = self.a
        self.srd(32, base, nrec)
        a(f"s_mul_i32 s50, s47, {32*stride}\ns_lshl_b32 s51, s66, 7\ns_add_u32 s50, s50, s51")
        a(f"s_mul_i32 s52, s47, {RINGW}")
        L = a.label("L_t64i")
        for j in range(5):
            if j == 4: a(f"s_cmp_ge_u32 s47, 2\ns_cbranch_scc1 {L}")
            for i in range(4):
                a(f"s_add_u32 m0, s52, {j*4096 + i*1024}")
                a(f"buffer_load_dwordx4 v{3 - (i & 1)}, s[32:35], s50 offen nt lds")
                if i < 3: a(f"s_add_u32 s50, s50, {8*stride}")
            if j < 4: a(f"s_add_u32 s50, s50, {(128-24)*stride}")
        a(f"{L}:")

    def t64_frags(self):
        a = self.a
        a("s_waitcnt vmcnt(0)")
        for j in range(5):
            for t in range(4):
                d = 96 + 16 * j + 4 * t
                a(f"ds_read_b64_tr_b16 v[{d}:{d+1}], v{52+t} offset:{j*4096}")
                a(f"ds_read_b64_tr_b16 v[{d+2}:{d+3}], v{52+t} offset:{j*4096 + 512}")

    def t64_mma_publish(self, xv, wbase):
        a = self.a
        a(f"v_add_u32 v6, {xv}, v5")
        for j in range(5):
            a(f"ds_read_b128 v[{32+4*j}:{35+4*j}], v6 offset:{j*256}")
        a("s_waitcnt lgkmcnt(0)")
        L = a.label("L_t64m")
        for j in range(5):
            if j == 4: a(f"s_cmp_ge_u32 s47, 2\ns_cbranch_scc1 {L}")
            for t in range(4):
                acc = 64 + 4 * t; b = 96 + 16 * j + 4 * t
                c = "0" if j == 0 else f"v[{acc}:{acc+3}]"
                a(f"v_mfma_f32_16x16x32_bf16 v[{acc}:{acc+3}], v[{32+4*j}:{35+4*j}], v[{b}:{b+3}], {c}")
        a(f"{L}:")
        a(f"""
        v_and_b32 v7, 31, v1
        v_lshlrev_b32 v7, 2, v7
        s_lshl_b32 s50, s47, 9
        s_add_u32 s50, s50, {L_MRG}
        v_add_u32 v8, s50, v7
        s_nop 3
        ds_write_b32 v8, v64
        ds_write_b32 v8, v68 offset:128
        ds_write_b32 v8, v72 offset:256
        ds_write_b32 v8, v76 offset:384
        """)
        self.lds_signal(F_RED)
        a(f"""
        s_lshl_b32 s50, s47, 7
        s_add_u32 s50, s50, {L_MRG}
        v_add_u32 v7, s50, v7
        s_lshl_b32 s50, s66, 2
        s_add_u32 s50, s50, s47
        s_lshl_b32 s50, s50, 7
        s_add_u32 s50, s50, {wbase}
        v_lshrrev_b32 v6, 1, v1
        v_lshlrev_b32 v6, 3, v6
        v_add_u32 v6, s50, v6
        v_mov_b32 v11, v58
        """)
        self.lds_wait(F_RED, 4, 17)
        a(f"""
        ds_read_b32 v8, v7
        ds_read_b32 v9, v7 offset:512
        ds_read_b32 v12, v7 offset:1024
        ds_read_b32 v14, v7 offset:1536
        s_mov_b32 s50, 0x55555555
        s_mov_b32 s51, 0
        s_waitcnt lgkmcnt(0)
        v_add_f32 v8, v8, v9
        v_add_f32 v12, v12, v14
        v_add_f32 v8, v8, v12
        v_mov_b32_dpp v9, v8 quad_perm:[1,0,3,2] row_mask:0xf bank_mask:0xf
        v_cvt_pk_bf16_f32 v10, v8, v9
        s_mov_b64 exec, s[50:51]
        global_store_dwordx2 v6, v[10:11], {S_WS} sc0 sc1
        s_mov_b64 exec, -1
        """)

    def lds_signal(self, flag):
        a = self.a
        a(f"s_waitcnt lgkmcnt(0)\nv_mov_b32 v62, {flag}\ns_mov_b64 exec, 1\nds_add_u32 v62, v61\ns_mov_b64 exec, -1")

    def lds_wait(self, flag, count, code):
        a = self.a
        L = a.label("L_lw")
        a(f"v_mov_b32 v63, {flag}\n{L}:")
        self.guard(code)
        a(f"ds_read_b32 v62, v63\ns_waitcnt lgkmcnt(0)\nv_readfirstlane_b32 s71, v62\ns_cmp_ge_u32 s71, {count}\ns_cbranch_scc0 {L}")

    def poll_guard(self, L, code=2):
        self.guard(code)
        self.a(f"s_cmp_lg_u64 s[52:53], 0\ns_cbranch_scc1 {L}")

    def helper(self):
        a = self.a
        R = D_RING; DL = self.o["delta"]
        if self.o.get("hprio", 3): a(f"s_setprio {self.o.get('hprio', 3)}")
        if self.o.get("dbgtime"):
            a("s_memrealtime s[76:77]")
        a(f"""
        s_sub_u32 s47, s3, 4
        v_lshrrev_b32 v8, 3, v1
        v_and_b32 v9, 7, v1
        v_bfe_u32 v10, v1, 4, 1
        v_lshlrev_b32 v10, 1, v10
        v_xor_b32 v9, v9, v10
        v_xor_b32 v12, 4, v9
        v_lshlrev_b32 v9, 4, v9
        v_lshlrev_b32 v12, 4, v12
        v_mov_b32 v14, 0
        ; v13 = vXo = b*1152 + (l>>4)*32 + (l&7)*4
        v_bfe_u32 v10, v1, 3, 1
        v_mul_u32_u24 v13, 1152, v10
        v_lshrrev_b32 v10, 4, v1
        v_lshl_add_u32 v13, v10, 5, v13
        v_and_b32 v10, 7, v1
        v_lshl_add_u32 v13, v10, 2, v13
        s_lshl_b32 s50, s47, 7
        v_add_u32 v15, s50, v13
        s_waitcnt lgkmcnt(0)
        global_load_dword v58, v14, {S_WS} sc1
        s_cmp_eq_u32 s65, 1
        s_cbranch_scc1 L_im
        s_cmp_eq_u32 s65, 2
        s_cbranch_scc0 L_idone
        """)
        a(f"""
        global_load_dword v19, v15, {S_X}
        global_load_dword v20, v15, {S_X} offset:512
        global_load_dword v21, v13, {S_X} offset:1024
        """)
        for bb in range(9):
            a(f"global_load_dword v{22+bb}, v13, {S_X} offset:{128*bb}")
        a(f"""
        s_lshl_b32 s46, s66, 2
        s_add_u32 s46, s46, s47              ; tq
        s_and_b32 s50, s46, 14
        s_cmp_eq_u32 s50, 0
        s_cbranch_scc0 L_i1n
        s_and_b32 s50, s46, 1
        s_lshl_b32 s50, s50, 4
        s_lshr_b32 s51, s46, 4
        s_add_u32 s50, s50, s51
        s_lshl_b32 s50, s50, 8
        s_add_u32 s50, s50, {W_CNT}
        v_mov_b32 v10, s50
        v_mov_b32 v11, {(R + 2*DL) * 32}
        s_mov_b64 exec, 1
        global_store_dword v10, v11, {S_WS} sc0 sc1
        s_mov_b64 exec, -1
        L_i1n:
        v_lshl_add_u32 v3, v8, 13, v9
        v_lshl_add_u32 v2, v8, 13, v12
        """)
        self.t64_issue((10, 11), 8192, 576 * 8192)
        a("s_branch L_idone\nL_im:")
        a(f"""
        global_load_dword v16, v15, {S_C}
        global_load_dword v17, v15, {S_C} offset:512
        global_load_dword v18, v13, {S_C} offset:1024
        v_mul_u32_u24 v3, 6912, v8
        v_add_u32 v2, v3, v12
        v_add_u32 v3, v3, v9
        """)
        self.t64_issue((24, 25), 6912, 576 * 6912)
        a("L_idone:")
        self.pstamp(8)
        a(f"""
        v_mov_b32 v61, 1
        s_cmp_eq_u32 s47, 2
        s_cbranch_scc0 L_h_nb
        v_mov_b32 v44, {L_FLAG}
        v_mov_b32 v46, 0
        v_mov_b32 v47, 0
        v_mov_b32 v48, 0
        v_mov_b32 v49, 0
        s_mov_b64 exec, 1
        ds_write_b128 v44, v[46:49]
        ds_write_b128 v44, v[46:49] offset:16
        s_mov_b64 exec, -1
        s_waitcnt lgkmcnt(0)
        L_h_nb:
        s_barrier
        """)
        self.stamp(1)
        a(f"""
        v_lshrrev_b32 v8, 4, v1              ; G
        v_and_b32 v9, 15, v1                 ; i
        v_lshrrev_b32 v10, 2, v9
        v_lshl_add_u32 v10, v8, 3, v10       ; 8G + (i>>2)
        v_and_b32 v11, 3, v9
        v_lshlrev_b32 v11, 3, v11            ; (i&3)*8
        v_lshl_add_u32 v4, v10, 7, v11
        s_mul_i32 s50, s47, {RINGW}
        v_add_u32 v4, s50, v4
        v_bfe_u32 v10, v1, 3, 1
        v_bfe_u32 v11, v1, 4, 1
        v_lshl_add_u32 v10, v11, 1, v10      ; f
        v_lshlrev_b32 v10, 5, v10            ; f*32
        v_add_u32 v52, v4, v10
        v_xor_b32 v11, 32, v10
        v_add_u32 v53, v4, v11
        v_xor_b32 v11, 64, v10
        v_add_u32 v54, v4, v11
        v_xor_b32 v11, 96, v10
        v_add_u32 v55, v4, v11
        v_bfe_u32 v12, v1, 2, 1
        v_mul_u32_u24 v5, 1152, v12
        v_lshl_add_u32 v5, v8, 4, v5
        s_lshl_b32 s50, s47, 6
        v_add_u32 v5, s50, v5
        s_mul_i32 s50, s47, {STGW}
        s_add_u32 s72, s50, {L_STG}
        s_lshr_b32 s50, s2, 4
        s_add_u32 s50, s50, s2
        s_and_b32 s50, s50, 7
        s_lshl_b32 s50, s50, 5
        s_lshr_b32 s51, s2, 3
        s_add_u32 s51, s51, s50              ; j
        s_mov_b32 s49, 1
        s_mov_b32 s48, s51
        s_cmp_lt_u32 s51, 144
        s_cbranch_scc1 L_h_rd
        s_mov_b32 s49, 2
        s_sub_u32 s48, s51, 144
        s_cmp_lt_u32 s51, 208
        s_cbranch_scc1 L_h_rd
        s_mov_b32 s49, 3
        s_sub_u32 s48, s51, 208
        s_cmp_lt_u32 s51, 244
        s_cbranch_scc1 L_h_rd
        s_mov_b32 s49, 0
        L_h_rd:
        s_cmp_eq_u32 s65, 0
        s_cbranch_scc1 L_early
        s_cmp_eq_u32 s65, 2
        s_cbranch_scc1 L_qcls
        """)
        a("s_cmp_ge_u32 s47, 2\ns_cbranch_scc1 L_mw16\ns_waitcnt vmcnt(20)\ns_branch L_mwd\nL_mw16:\ns_waitcnt vmcnt(16)\nL_mwd:")
        self.stamp(2)
        a("v_add_u32 v58, 1, v58            ; tag")
        a(f"s_mov_b32 s54, {NLOG2E:#x}")
        for k in range(3):
            src = f"v{16+k}"
            self.unpk("v8", "v9", src)
            a("""
            v_mul_f32 v10, s54, v8
            v_mul_f32 v11, s54, v9
            v_exp_f32 v10, v10
            v_exp_f32 v11, v11
            v_add_f32 v10, 1.0, v10
            v_add_f32 v11, 1.0, v11
            v_rcp_f32 v10, v10
            v_rcp_f32 v11, v11
            v_mul_f32 v8, v8, v10
            v_mul_f32 v9, v9, v11
            """)
            a(f"v_cvt_pk_bf16_f32 {src}, v8, v9")
        a(f"""
        v_add_u32 v14, {L_XV0}, v15
        v_add_u32 v12, {L_XV0}, v13
        ds_write_b32 v14, v16
        ds_write_b32 v14, v17 offset:512
        ds_write_b32 v12, v18 offset:1024
        """)
        self.lds_signal(F_SC)
        self.t64_frags()
        self.lds_wait(F_SC, 4, 13)
        self.stamp(3)
        self.t64_mma_publish(L_XV0, W_MOD)
        self.lds_signal(F_PUB)
        self.stamp(4)
        a("s_branch L_common")
        a("L_qcls:")
        a("s_cmp_ge_u32 s47, 2\ns_cbranch_scc1 L_qw16\ns_waitcnt vmcnt(20)\ns_branch L_qwd\nL_qw16:\ns_waitcnt vmcnt(16)\nL_qwd:")
        self.stamp(2)
        a("v_add_u32 v58, 1, v58            ; tag")
        for bb in range(9):
            self.unpk(f"v{64+2*bb}", f"v{65+2*bb}", f"v{22+bb}")
        a("v_add_f32 v8, v64, v65")
        for r in range(66, 82): a(f"v_add_f32 v8, v8, v{r}")
        self.red_b3("v8", "v9", "v_add_f32")
        a(f"v_mul_f32 v8, {INV576:#x}, v8")
        a("v_sub_f32 v10, v64, v8\nv_mul_f32 v11, v10, v10")
        for r in range(65, 82): a(f"v_sub_f32 v10, v{r}, v8\nv_fmac_f32 v11, v10, v10")
        self.red_b3("v11", "v9", "v_add_f32")
        a(f"v_mul_f32 v11, {INV576:#x}, v11    ; var")
        self.ln_denom("v8", "v11", "v9")
        for k in range(3):
            self.unpk(f"v{80+2*k}", f"v{81+2*k}", f"v{19+k}")
            self.ln_norm(f"v{80+2*k}", f"v{81+2*k}", "v8", "v11", "v9")
        self.t64_frags()
        self.stamp(3)
        a(f"""
        v_lshlrev_b32 v14, 3, v1
        s_lshl_b32 s50, s47, 9
        s_add_u32 s50, s50, {W_MOD}
        v_add_u32 v15, s50, v14
        v_add_u32 v14, {W_MOD + 8*512}, v14  ; block 8
        v_add_u32 v16, 4608, v15
        v_add_u32 v17, 4608, v14
        """)
        self.mark(76)
        if self.stamps and self.o.get("probe") == "hop1":
            a("s_memrealtime s[94:95]\ns_mov_b32 s75, 0")
        L = a.label("L_hop1")
        a(f"""
        {L}:
        global_load_dwordx2 v[18:19], v15, {S_WS} sc1
        global_load_dwordx2 v[20:21], v15, {S_WS} offset:2048 sc1
        global_load_dwordx2 v[22:23], v14, {S_WS} sc1
        global_load_dwordx2 v[24:25], v16, {S_WS} sc1
        global_load_dwordx2 v[26:27], v16, {S_WS} offset:2048 sc1
        global_load_dwordx2 v[28:29], v17, {S_WS} sc1
        s_waitcnt vmcnt(0)
        s_mov_b64 s[52:53], 0
        """)
        if self.stamps and self.o.get("probe") == "hop1":
            Lp = a.label("L_pr")
            a(f"s_cmp_eq_u32 s75, 0\ns_cbranch_scc0 {Lp}\ns_memrealtime s[96:97]\ns_mov_b32 s75, 1\n{Lp}:\ns_memrealtime s[98:99]")
        for r in (19, 21, 23, 25, 27, 29):
            a(f"v_cmp_ne_u32 vcc, v{r}, v58\ns_or_b64 s[52:53], s[52:53], vcc")
        self.poll_guard(L, 5)
        self.mark(77)
        for k in range(3):
            sa, ca = f"v{18+2*k}", f"v{24+2*k}"
            n0, n1 = f"v{80+2*k}", f"v{81+2*k}"
            self.unpk("v8", "v9", ca)
            a("v_add_f32 v8, 1.0, v8\nv_add_f32 v9, 1.0, v9")
            self.rbf2("v8", "v9", "v10")
            a(f"v_mul_f32 v8, {n0}, v8\nv_mul_f32 v9, {n1}, v9")
            self.rbf2("v8", "v9", "v10")
            self.unpk("v10", "v11", sa)
            a("v_add_f32 v8, v8, v10\nv_add_f32 v9, v9, v11")
            a(f"v_cvt_pk_bf16_f32 v{86+k}, v8, v9")
        a(f"""
        s_lshl_b32 s50, s47, 7
        s_add_u32 s50, s50, {L_XV1}
        v_add_u32 v14, s50, v13
        v_add_u32 v12, {L_XV1}, v13
        ds_write_b32 v14, v86
        ds_write_b32 v14, v87 offset:512
        ds_write_b32 v12, v88 offset:1024
        """)
        self.lds_signal(F_H)
        self.lds_wait(F_H, 4, 14)
        self.stamp(4)
        self.t64_mma_publish(L_XV1, W_Q)
        a("s_branch L_common")
        a("L_early:\ns_waitcnt vmcnt(0)")
        self.stamp(2)
        a("v_add_u32 v58, 1, v58            ; tag")
        a("L_common:")
        self.stamp(5)
        a("s_cmp_eq_u32 s47, 2\ns_cbranch_scc0 L_h_nq")
        a(f"""
        s_lshr_b32 s50, s2, 3                ; group
        s_and_b32 s51, s50, 15               ; hkv
        s_lshr_b32 s50, s50, 4               ; b
        s_lshl_b32 s51, s51, 11
        s_lshl_b32 s50, s50, 6
        s_add_u32 s50, s50, s51
        s_add_u32 s50, s50, {W_Q}
        v_lshrrev_b32 v14, 2, v1
        v_lshlrev_b32 v14, 7, v14
        v_and_b32 v15, 3, v1
        v_lshl_add_u32 v14, v15, 4, v14
        v_add_u32 v14, s50, v14
        """)
        self.mark(78)
        L = a.label("L_hop2")
        a(f"""
        {L}:
        global_load_dwordx4 v[16:19], v14, {S_WS} sc1
        s_waitcnt vmcnt(0)
        v_cmp_ne_u32 vcc, v17, v58
        s_mov_b64 s[52:53], vcc
        v_cmp_ne_u32 vcc, v19, v58
        s_or_b64 s[52:53], s[52:53], vcc
        """)
        self.poll_guard(L, 6)
        self.mark(79)
        a(f"""
        v_mov_b32 v17, v18
        v_lshlrev_b32 v14, 3, v1
        v_add_u32 v14, {L_QB}, v14
        ds_write_b64 v14, v[16:17]
        s_waitcnt lgkmcnt(0)
        v_mov_b32 v14, {F_Q}
        s_mov_b64 exec, 1
        ds_write_b32 v14, v61
        s_mov_b64 exec, -1
        L_h_nq:
        """)
        a(f"""
        s_cmp_eq_u32 s47, 3
        s_cbranch_scc0 L_h_s4
        v_mov_b32 v40, -1
        v_mov_b32 v41, -1
        v_mov_b32 v42, -1
        v_mov_b32 v43, -1
        v_lshlrev_b32 v44, 4, v1
        s_mul_i32 s50, s2, {PARTW}
        s_add_u32 s50, s50, {W_PART}
        v_add_u32 v45, s50, v44
        global_store_dwordx4 v45, v[40:43], {S_WS} sc0 sc1
        s_mov_b64 exec, 0xff
        global_store_dwordx4 v45, v[40:43], {S_WS} offset:1024 sc0 sc1
        s_mov_b64 exec, -1
        s_cmp_eq_u32 s49, 3
        s_cbranch_scc0 L_h_s2
        s_lshl_b32 s50, s48, 7
        s_add_u32 s50, s50, {W_X1}
        v_add_u32 v45, s50, v44
        s_mov_b64 exec, 0xff
        global_store_dwordx4 v45, v[40:43], {S_WS} sc0 sc1
        s_mov_b64 exec, -1
        s_branch L_h_s3
        L_h_s2:
        s_cmp_eq_u32 s49, 0
        s_cbranch_scc1 L_h_s3
        s_mov_b32 s51, {W_Z}
        s_cmp_eq_u32 s49, 2
        s_cselect_b32 s51, {W_Y}, s51
        s_mul_i32 s50, s48, 4608
        s_add_u32 s50, s50, s51
        v_add_u32 v45, s50, v44
        global_store_dwordx4 v45, v[40:43], {S_WS} sc0 sc1
        global_store_dwordx4 v45, v[40:43], {S_WS} offset:1024 sc0 sc1
        global_store_dwordx4 v45, v[40:43], {S_WS} offset:2048 sc0 sc1
        global_store_dwordx4 v45, v[40:43], {S_WS} offset:3072 sc0 sc1
        v_add_u32 v45, 4096, v45
        s_mov_b32 s50, -1
        s_mov_b32 s51, 0
        s_mov_b64 exec, s[50:51]
        global_store_dwordx4 v45, v[40:43], {S_WS} sc0 sc1
        s_mov_b64 exec, -1
        L_h_s3:
        s_waitcnt vmcnt(0)
        s_mov_b64 exec, 1
        v_mov_b32 v14, 0
        global_atomic_add v14, v61, {S_DBG} sc1
        s_mov_b64 exec, -1
        L_h_s4:
        """)
        if self.o.get("hgate", 1):
            self.lds_wait(F_Q, 1, 16)
        a("""
        s_cmp_eq_u32 s49, 1
        s_cbranch_scc1 L_ffn
        s_cmp_eq_u32 s49, 2
        s_cbranch_scc1 L_wo
        s_cmp_eq_u32 s49, 3
        s_cbranch_scc1 L_red
        s_barrier
        s_branch L_hdone
        """)
        self.in_role = True
        self.role_ffn()
        self.role_wo()
        self.role_red()
        a("L_hdone:")
        self.stamp_flush()
        a("s_endpgm")

    def red_b3(self, v, t, op):
        self.dppop(op, v, "quad_perm:[1,0,3,2]")
        self.dppop(op, v, "quad_perm:[2,3,0,1]")
        self.dppop(op, v, "row_half_mirror")
        self.red16_32(v, t, op)

    def red_all(self, v, t, op):
        self.dppop(op, v, "quad_perm:[1,0,3,2]")
        self.dppop(op, v, "quad_perm:[2,3,0,1]")
        self.dppop(op, v, "row_half_mirror")
        self.dppop(op, v, "row_ror:8")
        self.red16_32(v, t, op)

    def ln_denom(self, mean, var, t):
        a = self.a
        self.rbf(mean, t)
        self.rbf(var, t)
        a(f"v_add_f32 {var}, {EPS:#x}, {var}")
        self.rbf(var, t)
        a(f"v_sqrt_f32 {var}, {var}")
        self.rbf(var, t)
        a(f"v_rcp_f32 {var}, {var}")

    def ln_norm(self, x0, x1, mean, rden, t):
        a = self.a
        a(f"v_sub_f32 {x0}, {x0}, {mean}\nv_sub_f32 {x1}, {x1}, {mean}")
        self.rbf2(x0, x1, t)
        a(f"v_mul_f32 {x0}, {x0}, {rden}\nv_mul_f32 {x1}, {x1}, {rden}")
        self.rbf2(x0, x1, t)

    def wait_init(self):
        a = self.a
        L = a.label("L_wi")
        a(f"""
        v_mov_b32 v14, 0
        {L}:
        """)
        self.guard(3)
        a(f"""
        global_load_dword v15, v14, {S_DBG} sc1
        s_waitcnt vmcnt(0)
        v_readfirstlane_b32 s50, v15
        s_cmp_ge_u32 s50, {NWG}
        s_cbranch_scc0 {L}
        """)

    def chunk128(self, soff, dreg):
        a = self.a
        a(f"s_mov_b32 s51, {soff}")
        for j in range(4):
            a(f"s_add_u32 m0, s72, {j*1024}")
            a(f"buffer_load_dwordx4 v6, s[32:35], s51 offen nt lds")
            if j < 3: a(f"s_add_u32 s51, s51, {8*1152}")
        a("s_waitcnt vmcnt(0)")
        for t in range(4):
            a(f"ds_read_b64_tr_b16 v[{dreg+4*t}:{dreg+4*t+1}], v7 offset:{t*32}")
            a(f"ds_read_b64_tr_b16 v[{dreg+4*t+2}:{dreg+4*t+3}], v7 offset:{t*32+512}")
        a("s_waitcnt lgkmcnt(0)")

    def raw128(self, soff, dreg):
        a = self.a
        a(f"s_mov_b32 s51, {soff}")
        for j in range(4):
            a(f"buffer_load_dwordx4 v[{dreg+4*j}:{dreg+4*j+3}], v6, s[32:35], s51 offen nt")
            if j < 3: a(f"s_add_u32 s51, s51, {8*1152}")

    def xpose(self, dreg, vtr, offs):
        a = self.a
        for j in range(4):
            a(f"ds_write_b128 v59, v[{dreg+4*j}:{dreg+4*j+3}] offset:{j*1024}")
        a("s_waitcnt lgkmcnt(0)")
        for t in range(4):
            a(f"ds_read_b64_tr_b16 v[{dreg+4*t}:{dreg+4*t+1}], {vtr} offset:{offs[t][0]}")
            a(f"ds_read_b64_tr_b16 v[{dreg+4*t+2}:{dreg+4*t+3}], {vtr} offset:{offs[t][1]}")
        a("s_waitcnt lgkmcnt(0)")

    def addr128(self):
        a = self.a
        a("""
        v_lshrrev_b32 v8, 3, v1
        v_mul_u32_u24 v6, 1152, v8
        v_and_b32 v8, 7, v1
        v_lshl_add_u32 v6, v8, 4, v6
        v_lshrrev_b32 v8, 4, v1
        v_and_b32 v9, 15, v1
        v_lshrrev_b32 v10, 2, v9
        v_lshl_add_u32 v10, v8, 3, v10
        v_lshlrev_b32 v7, 7, v10
        v_and_b32 v11, 3, v9
        v_lshl_add_u32 v7, v11, 3, v7
        v_add_u32 v7, s72, v7
        """)

    def pair_store(self, d0, d1, vaddr, off, t):
        a = self.a
        a(f"v_cndmask_b32 {t}, {d0}, {d1}, s[56:57]")
        a(f"v_min_u32 {t}, -2, {t}")
        a(f"global_store_dword {vaddr}, {t}, {S_WS} offset:{off} sc0 sc1")

    def out_addr(self, vdst, base_s):
        a = self.a
        a(f"""
        v_bfe_u32 v8, v1, 4, 1
        v_mul_u32_u24 {vdst}, {18*128}, v8
        v_lshrrev_b32 v8, 5, v1
        v_lshlrev_b32 v8, 4, v8
        v_and_b32 v9, 15, v1
        v_add_u32 v8, v8, v9
        v_lshl_add_u32 {vdst}, v8, 2, {vdst}
        v_add_u32 {vdst}, {base_s}, {vdst}
        s_mov_b32 s56, 0
        s_mov_b32 s57, -1
        """)

    def role_wo(self):
        a = self.a
        WB = 96
        a("L_wo:")
        self.srd(32, (12, 13), 4096 * 1152)
        self.addr128()
        a("v_lshlrev_b32 v59, 4, v1\nv_add_u32 v59, s72, v59")
        O128 = [(t * 32, t * 32 + 512) for t in range(4)]
        for k in range(3):
            L = a.label("L_wo_sk")
            if k == 2: a(f"s_cmp_lg_u32 s47, 0\ns_cbranch_scc1 {L}")
            for s in range(2):
                a(f"s_mul_i32 s50, s48, {64*1152}\ns_lshl_b32 s55, s47, 7\ns_add_u32 s50, s50, s55\ns_add_u32 s54, s50, {s*32*1152 + k*4*128}")
                self.raw128("s54", WB + (k*2+s)*16)
            a(f"{L}:")
        a("s_waitcnt vmcnt(0)")
        for k in range(3):
            L = a.label("L_wo_xp")
            if k == 2: a(f"s_cmp_lg_u32 s47, 0\ns_cbranch_scc1 {L}")
            for s in range(2):
                self.xpose(WB + (k*2+s)*16, "v7", O128)
            a(f"{L}:")
        a(f"""
        s_mul_i32 s50, s48, 4608
        s_add_u32 s50, s50, {W_Y}
        s_lshl_b32 s51, s47, 8
        s_add_u32 s62, s50, s51
        """)
        self.out_addr("v20", "s62")
        a(f"""
        s_lshr_b32 s50, s48, 2               ; hkv
        s_bfe_u32 s51, s48, 0x10001          ; hh
        s_and_b32 s52, s48, 1                ; half
        s_mul_i32 s50, s50, {8*PARTW}
        s_add_u32 s50, s50, {W_PART}
        v_bfe_u32 v8, v1, 4, 1
        v_mul_u32_u24 v21, {128*PARTW}, v8
        v_lshrrev_b32 v8, 5, v1
        v_mul_u32_u24 v8, {4*PARTW}, v8
        v_add_u32 v21, v21, v8
        v_add_u32 v21, s50, v21
        s_lshl_b32 s53, s51, 3
        v_add_u32 v22, s53, v21
        s_lshl_b32 s51, s51, 9
        s_lshl_b32 s52, s52, 8
        s_add_u32 s51, s51, s52
        v_and_b32 v8, 15, v1
        v_lshlrev_b32 v8, 4, v8
        v_add_u32 v21, v21, v8
        v_add_u32 v21, s51, v21              ; O address
        """)
        a(f"""
        v_bfe_u32 v8, v1, 2, 1
        v_lshlrev_b32 v23, 7, v8
        v_lshrrev_b32 v8, 4, v1
        v_lshl_add_u32 v23, v8, 4, v23
        v_add_u32 v23, {L_OB}, v23
        s_mov_b32 s54, {LOG2E:#x}
        """)
        self.wait_init()
        self.stamp(6)
        a("s_barrier")
        self.stamp(7)
        a("s_cmp_eq_u32 s47, 0\ns_cbranch_scc0 L_wo_np")
        L = a.label("L_hopA")
        a(f"{L}:")
        for j in range(4):
            a(f"v_add_u32 v8, {j*PARTW}, v21\nglobal_load_dwordx4 v[{32+4*j}:{35+4*j}], v8, {S_WS} sc1")
            a(f"v_add_u32 v8, {j*PARTW}, v22\nglobal_load_dwordx2 v[{48+2*j}:{49+2*j}], v8, {S_WS} offset:1024 sc1")
        a("s_waitcnt vmcnt(0)\ns_mov_b64 s[52:53], 0")
        for r in range(32, 56):
            a(f"v_cmp_eq_u32 vcc, -1, v{r}\ns_or_b64 s[52:53], s[52:53], vcc")
        self.poll_guard(L, 7)
        a("v_max3_f32 v8, v48, v50, v52\nv_max_f32 v8, v8, v54")
        self.red32("v8", "v9", "v_max_f32")
        for j in range(4):
            a(f"v_sub_f32 v{48+2*j}, v{48+2*j}, v8\nv_mul_f32 v{48+2*j}, s54, v{48+2*j}")
        for j in range(4):
            a(f"v_exp_f32 v{48+2*j}, v{48+2*j}")
        a("v_mul_f32 v10, v48, v49\nv_fmac_f32 v10, v50, v51\nv_fmac_f32 v10, v52, v53\nv_fmac_f32 v10, v54, v55")
        self.red32("v10", "v9", "v_add_f32")
        a("v_rcp_f32 v10, v10")
        for i in range(4):
            a(f"v_mul_f32 v{12+i}, v48, v{32+i}")
            for j in range(1, 4):
                a(f"v_fmac_f32 v{12+i}, v{48+2*j}, v{32+4*j+i}")
            self.red32(f"v{12+i}", "v9", "v_add_f32")
            a(f"v_mul_f32 v{12+i}, v{12+i}, v10")
        a(f"""
        v_cvt_pk_bf16_f32 v16, v12, v13
        v_cvt_pk_bf16_f32 v17, v14, v15
        v_and_b32 v8, 31, v1
        v_lshlrev_b32 v8, 3, v8
        v_add_u32 v8, {L_OB}, v8
        ds_write_b64 v8, v[16:17]
        s_waitcnt lgkmcnt(0)
        L_wo_np:
        s_barrier
        ds_read_b128 v[24:27], v23
        ds_read_b128 v[28:31], v23 offset:64
        s_waitcnt lgkmcnt(0)
        """)
        self.stamp(8)
        for k in range(3):
            L = a.label("L_wo_mk")
            if k == 2: a(f"s_cmp_lg_u32 s47, 0\ns_cbranch_scc1 {L}")
            for t in range(4):
                acc = 32 + 4 * t
                b0 = WB + (k*2) * 16 + 4 * t; b1 = WB + (k*2+1) * 16 + 4 * t
                a(f"v_mfma_f32_16x16x32_bf16 v[{acc}:{acc+3}], v[24:27], v[{b0}:{b0+3}], 0")
                a(f"v_mfma_f32_16x16x32_bf16 v[{acc}:{acc+3}], v[28:31], v[{b1}:{b1+3}], v[{acc}:{acc+3}]")
            a("s_nop 7")
            self.pair_store("v32", "v36", "v20", k * 1024, "v48")
            self.pair_store("v40", "v44", "v20", k * 1024 + 128, "v49")
            a(f"{L}:")
        self.stamp(9)
        a("s_branch L_hdone")

    def role_ffn(self):
        a = self.a
        GB = 96
        DB = 176
        a("L_ffn:")
        self.srd(32, (16, 17), 576 * 9216)
        self.srd(36, (18, 19), 576 * 9216)
        a("""
        v_lshrrev_b32 v8, 2, v1
        v_mul_u32_u24 v6, 9216, v8
        v_and_b32 v8, 3, v1
        v_lshl_add_u32 v6, v8, 4, v6
        v_lshrrev_b32 v8, 4, v1
        v_and_b32 v9, 15, v1
        v_lshrrev_b32 v10, 2, v9
        v_lshl_add_u32 v10, v8, 3, v10
        v_lshlrev_b32 v7, 6, v10
        v_and_b32 v11, 3, v9
        v_lshl_add_u32 v7, v11, 3, v7
        v_add_u32 v7, s72, v7
        """)
        a("v_lshlrev_b32 v59, 4, v1\nv_add_u32 v59, s72, v59\nv_mov_b32 v57, v7")
        for j in range(5):
            L = a.label("L_ffn_sk")
            if j == 4: a(f"s_cmp_ge_u32 s47, 2\ns_cbranch_scc1 {L}")
            d = GB + 16 * j
            a(f"s_add_u32 s50, s47, {4*j}\ns_mul_i32 s50, s50, {32*9216}\ns_lshl_b32 s51, s48, 6\ns_add_u32 s50, s50, s51\ns_add_u32 s51, s50, {16*9216}")
            a(f"buffer_load_dwordx4 v[{d}:{d+3}], v6, s[32:35], s50 offen nt")
            a(f"buffer_load_dwordx4 v[{d+4}:{d+7}], v6, s[32:35], s51 offen nt")
            a(f"buffer_load_dwordx4 v[{d+8}:{d+11}], v6, s[36:39], s50 offen nt")
            a(f"buffer_load_dwordx4 v[{d+12}:{d+15}], v6, s[36:39], s51 offen nt")
            a(f"{L}:")
        self.srd(32, (20, 21), 4608 * 1152)
        self.addr128()
        for k in range(3):
            L = a.label("L_ffn_dk")
            if k == 2: a(f"s_cmp_lg_u32 s47, 0\ns_cbranch_scc1 {L}")
            a(f"s_mul_i32 s50, s48, {32*1152}\ns_lshl_b32 s55, s47, 7\ns_add_u32 s50, s50, s55\ns_add_u32 s54, s50, {k*4*128}")
            self.raw128("s54", DB + k * 16)
            a(f"{L}:")
        a("s_waitcnt vmcnt(0)")
        OGU = [((t >> 1) * 2048 + (t & 1) * 32, (t >> 1) * 2048 + (t & 1) * 32 + 256) for t in range(4)]
        O128 = [(t * 32, t * 32 + 512) for t in range(4)]
        for j in range(5):
            L = a.label("L_ffn_xp")
            if j == 4: a(f"s_cmp_ge_u32 s47, 2\ns_cbranch_scc1 {L}")
            self.xpose(GB + 16 * j, "v57", OGU)
            a(f"{L}:")
        for k in range(3):
            L = a.label("L_ffn_xd")
            if k == 2: a(f"s_cmp_lg_u32 s47, 0\ns_cbranch_scc1 {L}")
            self.xpose(DB + k * 16, "v7", O128)
            a(f"{L}:")
        a(f"""
        s_and_b32 s50, s47, 1
        s_lshl_b32 s50, s50, 6               ; b*64
        v_add_u32 v8, 128, v1
        v_min_u32 v8, 143, v8
        v_lshrrev_b32 v9, 2, v8
        v_lshlrev_b32 v9, 7, v9
        v_and_b32 v10, 3, v8
        v_lshl_add_u32 v9, v10, 4, v9
        v_add_u32 v25, s50, v9
        v_lshrrev_b32 v9, 2, v1
        v_lshlrev_b32 v9, 7, v9
        v_and_b32 v10, 3, v1
        v_lshl_add_u32 v9, v10, 4, v9
        v_add_u32 v24, s50, v9
        v_add_u32 v26, {W_MOD + 108*128}, v24
        v_add_u32 v27, {W_MOD + 108*128}, v25
        v_add_u32 v28, {W_MOD + 144*128}, v24
        v_add_u32 v29, {W_MOD + 144*128}, v25
        """)
        L = a.label("L_ffn_pp")
        a(f"""
        {L}:
        global_load_dwordx4 v[32:35], v26, {S_WS} sc1
        global_load_dwordx4 v[36:39], v26, {S_WS} offset:2048 sc1
        global_load_dwordx4 v[40:43], v27, {S_WS} sc1
        global_load_dwordx4 v[44:47], v28, {S_WS} sc1
        global_load_dwordx4 v[48:51], v28, {S_WS} offset:2048 sc1
        global_load_dwordx4 v[52:55], v29, {S_WS} sc1
        s_waitcnt vmcnt(0)
        s_mov_b64 s[52:53], 0
        """)
        for r in range(33, 56, 2):
            a(f"v_cmp_ne_u32 vcc, v{r}, v58\ns_or_b64 s[52:53], s[52:53], vcc")
        self.poll_guard(L, 8)
        for rho in range(3):
            a(f"v_mov_b32 v{224+2*rho}, v{32+4*rho}\nv_mov_b32 v{225+2*rho}, v{34+4*rho}")
            for h in range(2):
                self.unpk("v8", "v9", f"v{44+4*rho+2*h}")
                a("v_add_f32 v8, 1.0, v8\nv_add_f32 v9, 1.0, v9")
                a(f"v_cvt_pk_bf16_f32 v{230+2*rho+h}, v8, v9")
        a(f"""
        s_and_b32 s50, s47, 1
        s_mul_i32 s51, s50, 2304
        s_add_u32 s51, s51, {W_X1}
        v_lshlrev_b32 v8, 4, v1
        v_add_u32 v20, s51, v8
        v_add_u32 v8, 128, v1
        v_min_u32 v9, 143, v8
        v_lshlrev_b32 v10, 4, v9
        v_add_u32 v21, s51, v10              ; rho 2
        s_mul_i32 s51, s50, 1152
        s_add_u32 s51, s51, {L_XV0}
        v_lshlrev_b32 v10, 3, v1
        v_add_u32 v22, s51, v10
        v_lshlrev_b32 v10, 3, v9
        v_add_u32 v23, s51, v10
        v_cmp_gt_u32 vcc, 144, v8
        v_cndmask_b32 v19, 0, 1.0, vcc
        """)
        a(f"""
        v_add_u32 v18, {L_XV0}, v5
        s_mul_i32 s50, s48, 4608
        s_add_u32 s50, s50, {W_Z}
        s_lshl_b32 s51, s47, 8
        s_add_u32 s62, s50, s51
        """)
        self.out_addr("v17", "s62")
        a(f"s_mov_b32 s54, {NLOG2E:#x}")
        self.wait_init()
        self.stamp(6)
        a("s_barrier")
        self.stamp(7)
        a("s_cmp_lt_u32 s47, 2\ns_cbranch_scc0 L_ffn_nx")
        L = a.label("L_hopC")
        a(f"""
        {L}:
        global_load_dwordx4 v[32:35], v20, {S_WS} sc1
        global_load_dwordx4 v[36:39], v20, {S_WS} offset:1024 sc1
        global_load_dwordx4 v[40:43], v21, {S_WS} sc1
        s_waitcnt vmcnt(0)
        s_mov_b64 s[52:53], 0
        """)
        for r in range(32, 44):
            a(f"v_cmp_eq_u32 vcc, -1, v{r}\ns_or_b64 s[52:53], s[52:53], vcc")
        self.poll_guard(L, 9)
        a("v_add_f32 v8, v40, v41\nv_add_f32 v9, v42, v43\nv_add_f32 v8, v8, v9\nv_mul_f32 v8, v8, v19")
        for r in range(32, 40): a(f"v_add_f32 v8, v8, v{r}")
        self.red_all("v8", "v9", "v_add_f32")
        a(f"v_mul_f32 v8, {INV576:#x}, v8")
        a("v_sub_f32 v10, v40, v8\nv_mul_f32 v11, v10, v10")
        for r in range(41, 44): a(f"v_sub_f32 v10, v{r}, v8\nv_fmac_f32 v11, v10, v10")
        a("v_mul_f32 v11, v11, v19")
        for r in range(32, 40): a(f"v_sub_f32 v10, v{r}, v8\nv_fmac_f32 v11, v10, v10")
        self.red_all("v11", "v9", "v_add_f32")
        a(f"v_mul_f32 v11, {INV576:#x}, v11")
        self.ln_denom("v8", "v11", "v9")
        for rho in range(3):
            for h in range(2):
                x0, x1 = f"v{32+4*rho+2*h}", f"v{33+4*rho+2*h}"
                self.ln_norm(x0, x1, "v8", "v11", "v9")
                self.unpk("v12", "v13", f"v{230+2*rho+h}")
                a(f"v_mul_f32 {x0}, {x0}, v12\nv_mul_f32 {x1}, {x1}, v13")
                self.rbf2(x0, x1, "v9")
                self.unpk("v12", "v13", f"v{224+2*rho+h}")
                a(f"v_add_f32 {x0}, {x0}, v12\nv_add_f32 {x1}, {x1}, v13")
                a(f"v_cvt_pk_bf16_f32 v{44+2*rho+h}, {x0}, {x1}")
        a("""
        ds_write_b64 v22, v[44:45]
        ds_write_b64 v22, v[46:47] offset:512
        ds_write_b64 v23, v[48:49]
        s_waitcnt lgkmcnt(0)
        L_ffn_nx:
        s_barrier
        """)
        self.stamp(8)
        for j in range(5):
            a(f"ds_read_b128 v[{32+4*j}:{35+4*j}], v18 offset:{j*256}")
        a("s_waitcnt lgkmcnt(0)")
        L = a.label("L_ffn_m5")
        for j in range(5):
            if j == 4: a(f"s_cmp_ge_u32 s47, 2\ns_cbranch_scc1 {L}")
            for t in range(4):
                acc = 64 + 4 * t; b = GB + 16 * j + 4 * t
                c = "0" if j == 0 else f"v[{acc}:{acc+3}]"
                a(f"v_mfma_f32_16x16x32_bf16 v[{acc}:{acc+3}], v[{32+4*j}:{35+4*j}], v[{b}:{b+3}], {c}")
        a(f"{L}:")
        a("s_nop 7")
        a(f"""
        v_and_b32 v8, 31, v1
        v_lshlrev_b32 v8, 2, v8
        s_lshl_b32 s50, s47, 9
        s_add_u32 s50, s50, {L_RED2}
        v_add_u32 v8, s50, v8
        ds_write_b32 v8, v64
        ds_write_b32 v8, v68 offset:128
        ds_write_b32 v8, v72 offset:256
        ds_write_b32 v8, v76 offset:384
        s_waitcnt lgkmcnt(0)
        s_barrier
        v_bfe_u32 v8, v1, 4, 1
        v_lshlrev_b32 v8, 7, v8
        v_lshrrev_b32 v9, 5, v1
        v_lshlrev_b32 v9, 4, v9
        v_and_b32 v10, 15, v1
        v_add_u32 v9, v9, v10
        v_lshl_add_u32 v8, v9, 2, v8
        v_add_u32 v8, {L_RED2}, v8
        """)
        for w in range(4):
            a(f"ds_read_b32 v{32+w}, v8 offset:{w*512}\nds_read_b32 v{36+w}, v8 offset:{w*512+256}")
        a("""
        s_waitcnt lgkmcnt(0)
        v_add_f32 v32, v32, v33
        v_add_f32 v34, v34, v35
        v_add_f32 v36, v36, v37
        v_add_f32 v38, v38, v39
        v_add_f32 v32, v32, v34
        v_add_f32 v36, v36, v38
        """)
        self.rbf2("v32", "v36", "v9")
        a("""
        v_mul_f32 v10, s54, v32
        v_exp_f32 v10, v10
        v_add_f32 v10, 1.0, v10
        v_rcp_f32 v10, v10
        v_mul_f32 v32, v32, v10
        """)
        self.rbf("v32", "v9")
        a(f"""
        v_mul_f32 v32, v32, v36
        v_cvt_pk_bf16_f32 v32, v32, v32
        s_lshl_b32 s50, s47, 7
        s_add_u32 s50, s50, {L_GU}
        v_lshlrev_b32 v8, 1, v1              ; b*64 + f*2
        v_add_u32 v8, s50, v8
        ds_write_b16 v8, v32
        v_bfe_u32 v8, v1, 2, 1
        v_lshlrev_b32 v8, 6, v8
        v_lshrrev_b32 v9, 4, v1
        v_lshl_add_u32 v8, v9, 4, v8
        v_add_u32 v8, s50, v8
        s_waitcnt lgkmcnt(0)
        ds_read_b128 v[24:27], v8
        s_waitcnt lgkmcnt(0)
        """)
        for k in range(3):
            L = a.label("L_ffn_mk")
            if k == 2: a(f"s_cmp_lg_u32 s47, 0\ns_cbranch_scc1 {L}")
            for t in range(4):
                acc = 32 + 4 * t; b = DB + 16 * k + 4 * t
                a(f"v_mfma_f32_16x16x32_bf16 v[{acc}:{acc+3}], v[24:27], v[{b}:{b+3}], 0")
            a("s_nop 7")
            self.pair_store("v32", "v36", "v17", k * 1024, "v48")
            self.pair_store("v40", "v44", "v17", k * 1024 + 128, "v49")
            a(f"{L}:")
        self.stamp(9)
        a("s_branch L_hdone")

    def red_phase(self, wbase, nblk_total, red, tag):
        a = self.a
        nj = (nblk_total + 3) // 4
        full = nblk_total // 4
        a(f"""
        s_lshl_b32 s50, s48, 7
        s_add_u32 s50, s50, {wbase}
        s_mul_i32 s51, s47, {8*4608}
        s_add_u32 s50, s50, s51
        v_lshrrev_b32 v8, 3, v1
        v_mul_u32_u24 v9, 4608, v8
        v_and_b32 v8, 7, v1
        v_lshl_add_u32 v9, v8, 4, v9
        v_add_u32 v20, s50, v9
        """)
        rem = nblk_total - 4 * full
        Lp = a.label(f"L_poll{tag}")
        a(f"{Lp}:")
        for j in range(nj):
            Ls = None
            if j >= full:
                Ls = a.label("L_rsk")
                a(f"v_mov_b32 v{32+4*j}, 0\nv_mov_b32 v{33+4*j}, 0\nv_mov_b32 v{34+4*j}, 0\nv_mov_b32 v{35+4*j}, 0")
                a(f"s_cmp_ge_u32 s47, {rem}\ns_cbranch_scc1 {Ls}")
            a(f"v_add_u32 v9, {j*32*4608}, v20\nglobal_load_dwordx4 v[{32+4*j}:{35+4*j}], v9, {S_WS} sc1")
            if Ls: a(f"{Ls}:")
        a("s_waitcnt vmcnt(0)\ns_mov_b64 s[52:53], 0")
        for r in range(32, 32 + 4 * nj):
            a(f"v_cmp_eq_u32 vcc, -1, v{r}\ns_or_b64 s[52:53], s[52:53], vcc")
        self.poll_guard(Lp, 10 if tag == "B" else 11)
        for i in range(4):
            for j in range(1, nj):
                a(f"v_add_f32 v{32+i}, v{32+i}, v{32+4*j+i}")
        for i in range(4):
            self.dppop("v_add_f32", f"v{32+i}", "row_ror:8")
        for i in range(4):
            self.red16_32(f"v{32+i}", "v9", "v_add_f32")
        a(f"""
        v_and_b32 v8, 7, v1
        v_lshlrev_b32 v8, 4, v8
        s_lshl_b32 s50, s47, 7
        s_add_u32 s50, s50, {red}
        v_add_u32 v8, s50, v8
        s_mov_b64 exec, 0xff
        ds_write_b128 v8, v[32:35]
        s_mov_b64 exec, -1
        s_waitcnt lgkmcnt(0)
        s_barrier
        v_and_b32 v9, 31, v1
        v_lshlrev_b32 v9, 2, v9
        v_add_u32 v9, {red}, v9
        ds_read_b32 v8, v9
        ds_read_b32 v10, v9 offset:128
        ds_read_b32 v11, v9 offset:256
        ds_read_b32 v12, v9 offset:384
        s_waitcnt lgkmcnt(0)
        v_add_f32 v8, v8, v10
        v_add_f32 v11, v11, v12
        v_add_f32 v8, v8, v11
        """)

    def role_red(self):
        a = self.a
        a("L_red:")
        a(f"""
        s_cmp_ge_u32 s48, 18
        s_cselect_b32 s60, 1, 0              ; b
        s_mul_i32 s50, s60, 18
        s_sub_u32 s61, s48, s50              ; m
        v_and_b32 v24, 31, v1
        s_lshl_b32 s50, s61, 5
        v_add_u32 v24, s50, v24              ; d
        s_mul_i32 s51, s60, 1152
        v_lshlrev_b32 v25, 1, v24
        v_add_u32 v25, s51, v25
        global_load_ushort v26, v25, {S_X}
        ; granule address: line t = type*36 + d/16 ; granule b*8 + (d%16)/2
        v_lshrrev_b32 v27, 4, v24
        v_lshlrev_b32 v27, 7, v27
        v_bfe_u32 v28, v24, 1, 3
        v_lshl_add_u32 v27, v28, 3, v27
        s_lshl_b32 s51, s60, 6
        v_add_u32 v27, s51, v27
        v_add_u32 v28, {W_MOD + 72*128}, v27
        v_add_u32 v29, {W_MOD + 180*128}, v27
        """)
        L = a.label("L_red_pp")
        a(f"""
        {L}:
        global_load_dwordx2 v[14:15], v28, {S_WS} sc1
        global_load_dwordx2 v[16:17], v29, {S_WS} sc1
        s_waitcnt vmcnt(0)
        v_cmp_ne_u32 vcc, v15, v58
        s_mov_b64 s[52:53], vcc
        v_cmp_ne_u32 vcc, v17, v58
        s_or_b64 s[52:53], s[52:53], vcc
        """)
        self.poll_guard(L, 12)
        a("""
        v_and_b32 v8, 1, v24
        v_cmp_eq_u32 vcc, 1, v8
        v_lshlrev_b32 v9, 16, v14
        v_and_b32 v10, 0xffff0000, v14
        v_cndmask_b32 v21, v9, v10, vcc
        v_lshlrev_b32 v9, 16, v16
        v_and_b32 v10, 0xffff0000, v16
        v_cndmask_b32 v22, v9, v10, vcc
        v_lshlrev_b32 v23, 16, v26
        """)
        self.wait_init()
        self.stamp(6)
        a("s_barrier")
        self.stamp(7)
        self.red_phase(W_Y, 8, L_RED, "B")
        self.rbf("v8", "v9")
        a("v_mul_f32 v8, v21, v8")
        self.rbf("v8", "v9")
        a("v_add_f32 v8, v23, v8")
        self.rbf("v8", "v9")
        a(f"""
        v_mov_b32 v19, v8                    ; x1
        s_cmp_eq_u32 s47, 0
        s_cbranch_scc0 L_red_n1
        s_lshl_b32 s50, s48, 7
        s_add_u32 s50, s50, {W_X1}
        v_lshlrev_b32 v9, 2, v1
        v_add_u32 v9, s50, v9
        s_mov_b32 s50, -1
        s_mov_b32 s51, 0
        s_mov_b64 exec, s[50:51]
        global_store_dword v9, v19, {S_WS} sc0 sc1
        s_mov_b64 exec, -1
        L_red_n1:
        """)
        self.stamp(8)
        self.red_phase(W_Z, 18, L_REDB, "D")
        self.rbf("v8", "v9")
        a("v_mul_f32 v8, v22, v8")
        self.rbf("v8", "v9")
        a("v_add_f32 v8, v19, v8")
        a(f"""
        s_cmp_eq_u32 s47, 0
        s_cbranch_scc0 L_red_n2
        v_mov_b32_dpp v9, v8 quad_perm:[1,0,3,2] row_mask:0xf bank_mask:0xf
        v_cvt_pk_bf16_f32 v10, v8, v9
        s_mul_i32 s50, s60, 1152
        s_lshl_b32 s51, s61, 6
        s_add_u32 s50, s50, s51
        v_lshlrev_b32 v9, 1, v1
        v_add_u32 v9, s50, v9
        s_mov_b32 s50, 0x55555555
        s_mov_b32 s51, 0
        s_mov_b64 exec, s[50:51]
        global_store_dword v9, v10, {S_OUT}
        s_cmp_eq_u32 s48, 0
        s_cbranch_scc0 L_red_n3
        s_mov_b64 exec, 1
        v_mov_b32 v9, 0
        global_store_dword v9, v58, {S_WS} sc0 sc1
        L_red_n3:
        s_mov_b64 exec, -1
        """)
        if self.o.get("dbgtime"):
            a(f"""
            s_memrealtime s[78:79]
            s_waitcnt lgkmcnt(0)
            s_mov_b64 exec, 1
            s_not_b32 s76, s76
            v_mov_b32 v2, 8
            v_mov_b32 v3, s76
            global_atomic_umax v2, v3, {S_DBG} sc1
            v_mov_b32 v4, 12
            v_mov_b32 v5, s78
            global_atomic_umax v4, v5, {S_DBG} sc1
            s_waitcnt vmcnt(0)
            s_mov_b64 exec, -1
            """)
        a("""
        L_red_n2:
        """)
        self.stamp(9)


if __name__ == "__main__":
    out = sys.argv[1] if len(sys.argv) > 1 else "main.s"
    stamps = "--stamps" in sys.argv
    opts = {}
    for x in sys.argv[2:]:
        if "=" in x:
            k, v = x.split("=")
            opts[k] = v if not v.lstrip("-").isdigit() else int(v)
    for k in ("dyn", "codepf"):
        if k in opts: opts[k] = bool(opts[k])
    g = Gen(stamps=stamps, opts=opts)
    txt = g.build()
    open(out, "w").write(txt)
    print("written", out, len(txt.splitlines()), "lines")
```
